```python
import torch

def _softmax(x, axis=-1):
    return torch.softmax(x, dim=axis)
def _gelu(x):
    return torch.nn.functional.gelu(x, approximate="tanh")
def _silu(x):
    return torch.nn.functional.silu(x)
def _sigmoid(x):
    return torch.sigmoid(x)
def _layernorm(x, axis=-1, eps=1e-5):
    m = x.mean(dim=axis, keepdim=True)
    v = x.var(dim=axis, keepdim=True, unbiased=False)
    return (x - m) / torch.sqrt(v + eps)
def _scatter_add(tgt, idx, src, axis=0):
    return tgt.clone().index_add_(axis, idx, src)
def _segment_sum(src, seg, n):
    out = torch.zeros((n,) + src.shape[1:], dtype=src.dtype)
    return out.index_add_(0, seg, src)
def _pad(x, pw):
    flat = tuple(v for pair in reversed(pw) for v in pair)
    return torch.nn.functional.pad(x, flat)

kernel_name = 'gated_mix__sliding_block_cached__sliding_block_cached__decode'

def setup_inputs():

    _w = (lambda a: (lambda t: t.to(torch.bfloat16) if t.is_floating_point() else t)(torch.as_tensor(a)))
    def _A_setup():
        B, Sq, D = 1, 1, 512
        Hq, Hkv, Sk, Dh = 32, 8, 32768, 128
        assert Hq % Hkv == 0, (Hq, Hkv)
        return {
            "x": _w((lambda *s: torch.randn(*s, dtype=torch.bfloat16) * 0.05)(B, Sq, D)),
            "k_cache": _w((lambda *s: torch.randn(*s, dtype=torch.bfloat16) * 6.4)(B, Hkv, Sk, Dh)),
            "v_cache": _w((lambda *s: torch.randn(*s, dtype=torch.bfloat16) * 0.05)(B, Hkv, Sk, Dh)),
            "wq": _w((lambda *s: torch.randn(*s, dtype=torch.bfloat16) * 6.4)(D, Hq * Dh) * (D ** -0.5)),
            "wo": _w((lambda *s: torch.randn(*s, dtype=torch.bfloat16) * 0.05)(Hq * Dh, D) * ((Hq * Dh) ** -0.5)),
        }
    _A_in = _A_setup()

    def _B_setup():
        B, Sq, D = 1, 1, 512
        Hq, Hkv, Sk, Dh = 32, 8, 32768, 128
        assert Hq % Hkv == 0, (Hq, Hkv)
        return {
            "x": _w((lambda *s: torch.randn(*s, dtype=torch.bfloat16) * 0.05)(B, Sq, D)),
            "k_cache": _w((lambda *s: torch.randn(*s, dtype=torch.bfloat16) * 6.4)(B, Hkv, Sk, Dh)),
            "v_cache": _w((lambda *s: torch.randn(*s, dtype=torch.bfloat16) * 0.05)(B, Hkv, Sk, Dh)),
            "wq": _w((lambda *s: torch.randn(*s, dtype=torch.bfloat16) * 6.4)(D, Hq * Dh) * (D ** -0.5)),
            "wo": _w((lambda *s: torch.randn(*s, dtype=torch.bfloat16) * 0.05)(Hq * Dh, D) * ((Hq * Dh) ** -0.5)),
        }
    _B_in = _B_setup()

    return {
        "A_x": _A_in["x"],
        "A_k_cache": _A_in["k_cache"],
        "A_v_cache": _A_in["v_cache"],
        "A_wq": _A_in["wq"],
        "A_wo": _A_in["wo"],
        "B_x": _B_in["x"],
        "B_k_cache": _B_in["k_cache"],
        "B_v_cache": _B_in["v_cache"],
        "B_wq": _B_in["wq"],
        "B_wo": _B_in["wo"],
        "gate_w": _w((lambda *s: torch.randn(*s, dtype=torch.bfloat16) * 0.05)(512) * 16.0),
    }

def reference(A_x, A_k_cache, A_v_cache, A_wq, A_wo, B_x, B_k_cache, B_v_cache, B_wq, B_wo, gate_w):
    def _A_ref(x, k_cache, v_cache, wq, wo):
        B, Sq, D = x.shape
        Hq, Dh = 32, 128
        Hkv, Sk = k_cache.shape[1], k_cache.shape[2]
        W = min(4096, max(256, Sk // 4))
        rep = Hq // Hkv
        q = (lambda x, *d: x.permute(*d))((x @ wq).reshape(B, Sq, Hq, Dh), 0, 2, 1, 3)
        k = (lambda x, n, axis: torch.repeat_interleave(x, n, dim=axis))(k_cache[:, :, Sk - W:, :], rep, axis=1)
        v = (lambda x, n, axis: torch.repeat_interleave(x, n, dim=axis))(v_cache[:, :, Sk - W:, :], rep, axis=1)
        scores = torch.einsum("bhqd,bhkd->bhqk", q, k) * (Dh ** -0.5)
        p = _softmax(scores, axis=-1)
        o = torch.einsum("bhqk,bhkd->bhqd", p, v)
        return (lambda x, *d: x.permute(*d))(o, 0, 2, 1, 3).reshape(B, Sq, Hq * Dh) @ wo

    def _B_ref(x, k_cache, v_cache, wq, wo):
        B, Sq, D = x.shape
        Hq, Dh = 32, 128
        Hkv, Sk = k_cache.shape[1], k_cache.shape[2]
        W = min(4096, max(256, Sk // 4))
        rep = Hq // Hkv
        q = (lambda x, *d: x.permute(*d))((x @ wq).reshape(B, Sq, Hq, Dh), 0, 2, 1, 3)
        k = (lambda x, n, axis: torch.repeat_interleave(x, n, dim=axis))(k_cache[:, :, Sk - W:, :], rep, axis=1)
        v = (lambda x, n, axis: torch.repeat_interleave(x, n, dim=axis))(v_cache[:, :, Sk - W:, :], rep, axis=1)
        scores = torch.einsum("bhqd,bhkd->bhqk", q, k) * (Dh ** -0.5)
        p = _softmax(scores, axis=-1)
        o = torch.einsum("bhqk,bhkd->bhqd", p, v)
        return (lambda x, *d: x.permute(*d))(o, 0, 2, 1, 3).reshape(B, Sq, Hq * Dh) @ wo

    x = A_x
    g = _sigmoid((x * gate_w).sum(-1, keepdims=True))
    a = _A_ref(x, A_k_cache, A_v_cache, A_wq, A_wo)
    b = _B_ref(x, B_k_cache, B_v_cache, B_wq, B_wo)
    return g * a + (1 - g) * b
```

```python
import re
KN = "gated_mix__sliding_block_cached__sliding_block_cached__decode_kernel"
HEADER = open("gated_mix__sliding_block_cached__sliding_block_cached__decode.s.ref").read().split("; Override launch geometry")[0]

def regs_of(tok):
    tok = tok.strip()
    if tok.startswith("-") or tok.startswith("|"): tok = tok.strip("-|")
    m = re.fullmatch(r"([vsa])(\d+)", tok)
    if m: return {(m.group(1), int(m.group(2)))}
    m = re.fullmatch(r"([vsa])\[(\d+):(\d+)\]", tok)
    if m: return {(m.group(1), i) for i in range(int(m.group(2)), int(m.group(3)) + 1)}
    if tok == "vcc": return {("s", 106), ("s", 107)}
    if tok == "vcc_lo": return {("s", 106)}
    if tok == "vcc_hi": return {("s", 107)}
    if tok == "exec": return {("s", 126), ("s", 127)}
    if tok == "m0": return {("s", 124)}
    return set()

TRANS = ("v_exp_", "v_log_", "v_rcp_", "v_rsq_", "v_sqrt_", "v_sin_", "v_cos_")
class Ins:
    pass

def parse(line):
    line = line.split(";")[0].strip()
    if not line or line.endswith(":") or line.startswith("."): return None
    parts = line.split(None, 1)
    op = parts[0]
    rest = parts[1] if len(parts) > 1 else ""
    ops = []; cur = ""; depth = 0
    for ch in rest:
        if ch == "[": depth += 1
        if ch == "]": depth -= 1
        if ch == "," and depth == 0: ops.append(cur.strip()); cur = ""
        else: cur += ch
    if cur.strip(): ops.append(cur.strip())
    mods = ""
    if ops:
        sp = ops[-1].split(None, 1)
        ops[-1] = sp[0]
        if len(sp) > 1: mods = sp[1]
    I = Ins(); I.op = op; I.ops = ops; I.mods = mods; I.line = line
    I.valu = op.startswith("v_") and not op.startswith("v_mfma")
    I.mfma = op.startswith("v_mfma")
    I.vmem = op.startswith(("buffer_", "global_", "flat_"))
    I.ds = op.startswith("ds_")
    I.salu = op.startswith("s_")
    I.trans = op.startswith(TRANS)
    I.dpp = ("quad_perm" in mods or "row_" in mods or "wave_" in mods or "_dpp" in op)
    I.permlane = op.startswith("v_permlane")
    I.lane = op.startswith(("v_readlane", "v_readfirstlane", "v_writelane"))
    I.dot = op.startswith("v_dot")
    I.nop = 0
    if op == "s_nop": I.nop = int(ops[0], 0) + 1
    W = set(); R = set()
    o = [regs_of(x) for x in ops]
    if I.valu or I.mfma:
        if op.startswith("v_cmp"):
            W |= o[0];
            for x in o[1:]: R |= x
            if op.startswith("v_cmpx"): W |= regs_of("exec")
        elif I.permlane and "swap" in op:
            W |= o[0] | o[1]; R |= o[0] | o[1]
        else:
            W |= o[0]
            start = 1
            if op.startswith(("v_add_co", "v_sub_co", "v_addc_co", "v_subb_co", "v_div_scale")):
                W |= o[1]; start = 2
            for x in o[start:]: R |= x
            if op.startswith(("v_fmac", "v_mac", "v_dot2c", "v_writelane")) or I.dpp: R |= o[0]
            if op.startswith("v_cndmask") and len(ops) == 3: R |= regs_of("vcc")
            if op.startswith(("v_addc_co", "v_subb_co")) and len(ops) == 4: R |= regs_of("vcc")
    elif I.vmem:
        if "store" in op or "atomic" in op:
            for x in o: R |= x
            I.stdata = o[0] if op.startswith("buffer_") else o[1]
        else:
            if "lds" not in mods.split(): W |= o[0]; rr = o[1:]
            else: rr = o
            for x in rr: R |= x
    elif I.ds:
        if "read" in op or "permute" in op or "swizzle" in op or "rtn" in op:
            W |= o[0]
            for x in o[1:]: R |= x
        else:
            for x in o: R |= x
    elif I.salu:
        if op.startswith(("s_cmp", "s_cbranch", "s_branch", "s_waitcnt", "s_barrier", "s_nop", "s_sleep", "s_endpgm", "s_setprio", "s_bitcmp")):
            for x in o: R |= x
        else:
            W |= o[0] if o else set()
            for x in o[1:]: R |= x
            if "saveexec" in op: W |= regs_of("exec"); R |= regs_of("exec")
    I.W = W; I.R = R
    return I

def vonly(s): return {r for r in s if r[0] in "va"}
def sonly(s): return {r for r in s if r[0] == "s"}

def need(P, C):
    n = 0
    if P.valu:
        pv = vonly(P.W); ps = sonly(P.W)
        if pv & vonly(C.R):
            if C.valu and C.dpp: n = max(n, 2)
            if C.permlane: n = max(n, 2)
            if C.lane and not C.op.startswith("v_writelane"): n = max(n, 1)
            if C.mfma: n = max(n, 2)
            if P.trans and C.valu: n = max(n, 1)
            if P.dot and (C.valu or C.mfma or C.vmem or C.ds) and not (C.op == P.op and False): n = max(n, 3)
        if P.dot and pv & vonly(C.W): n = max(n, 3)
        if C.permlane and pv & vonly(C.W): n = max(n, 2)
        if ps & sonly(C.R):
            if C.valu: n = max(n, 2)
            if C.lane: n = max(n, 4)
            if C.vmem: n = max(n, 5)
            if C.mfma: n = max(n, 4)
        if ps & regs_of("exec"):
            if C.dpp: n = max(n, 5)
            if C.mfma or C.lane or C.permlane: n = max(n, 4)
    if P.mfma:
        passes = 8 if "32x32" in P.op else 4
        d = vonly(P.W)
        if C.mfma:
            ab = regs_of(C.ops[1]) | regs_of(C.ops[2]); c = regs_of(C.ops[3])
            if d & ab: n = max(n, passes + 4)
            if d & c:
                if c != d: n = max(n, passes + 2)
            if d & vonly(C.W) and C.W != d: n = max(n, passes + 4)
        elif (C.valu or C.vmem or C.ds) and (d & (vonly(C.R) | vonly(C.W))): n = max(n, passes + 4)
        cin = regs_of(P.ops[3])
        if C.valu and (cin & vonly(C.W)): n = max(n, passes - 1)
    if P.vmem and hasattr(P, "stdata") and len(P.stdata) >= 3:
        if P.stdata & vonly(C.W): n = max(n, 2 if C.valu or C.mfma else 1)
    return n

class Asm:
    def __init__(self, auto=True):
        self.lines = []
        self.nlabel = 0
        self.hist = []
        self.auto = auto
        self.nops = 0
    def emit1(self, l):
        l = l.strip()
        if not l or l.startswith(";"):
            if l: self.lines.append("    " + l)
            return
        if l.endswith(":"):
            self.lines.append(l); return
        I = parse(l)
        if I is None:
            self.lines.append("    " + l); return
        if self.auto:
            dist = 0; req = 0
            for P in reversed(self.hist):
                r = need(P, I) - dist
                if r > req: req = r
                dist += P.nop if P.nop else 1
                if dist > 24: break
            if req > 0:
                k = req
                while k > 0:
                    m = min(k, 16)
                    self.lines.append(f"    s_nop {m-1}")
                    N = parse(f"s_nop {m-1}"); self.hist.append(N); k -= m
                    self.nops += 1
            self.hist.append(I)
            if len(self.hist) > 64: self.hist = self.hist[-40:]
        self.lines.append("    " + l)
    def __call__(self, s):
        for l in s.strip("\n").split("\n"):
            self.emit1(l)
    def label(self, base="L"):
        self.nlabel += 1
        return f"{base}_{self.nlabel}"
    def text(self, grid, block, lds, vgpr, sgpr=102, accum=None):
        if accum is None: accum = (vgpr + 3) // 4 * 4
        out = HEADER
        out += "; Override launch geometry by editing the next line (default: block=256,\n; grid=ceil(out_elems/256), lds=0). Harness parses it; keep it on one line.\n"
        out += f"; @launch grid=({grid},1,1) block=({block},1,1) lds={lds}\n"
        out += '.amdgcn_target "amdgcn-amd-amdhsa--gfx950"\n.text\n'
        out += f".globl {KN}\n.p2align 8\n.type {KN},@function\n{KN}:\n"
        out += "\n".join(self.lines) + "\n"
        out += "s_endpgm\n"
        out += '.section .rodata,"a"\n.p2align 6\n'
        out += f".amdhsa_kernel {KN}\n  .amdhsa_next_free_vgpr {vgpr}\n  .amdhsa_next_free_sgpr {sgpr}\n  .amdhsa_accum_offset {accum}\n"
        out += "  .amdhsa_group_segment_fixed_size 0\n  .amdhsa_kernarg_size 112\n  .amdhsa_user_sgpr_count 2\n  .amdhsa_user_sgpr_kernarg_segment_ptr 1\n  .amdhsa_system_sgpr_workgroup_id_x 1\n.end_amdhsa_kernel\n"
        return out
```

```python
import sys
from asmlib import *
import mk

QFLAG = 0x8000
OFLAG = 0x50000
OSTAT = 0x4000
QREC  = 0x10000
FREC  = 0x80000
OREC  = 0x100000
TSOFF = 64 << 20
L_QP = 0
L_QB = 4096
L_MX = 5120
L_LS = 5248
L_OP = 8192
LDS_BYTES = 24576
SPIN = 100000

def gen(name, ts=False, NK1=8, NV1=4, WOPOS="afterQ", hint1=True, hint2=True, BAR0=1, BAR1=1, BARP=1):
    a = Asm()
    stampn = [0]
    def stamp():
        if not ts: return
        k = stampn[0]; stampn[0] += 1
        assert k < 10
        a(f"s_memrealtime s[{4+2*k}:{5+2*k}]")
    a(f"""
    s_cmp_ge_u32 s2, 256
    s_cbranch_scc1 END
    """)
    if ts: a("s_memrealtime s[100:101]")
    a(f"""
    s_load_dwordx16 s[4:19], s[0:1], 0
    s_load_dwordx8 s[20:27], s[0:1], 64
    s_load_dwordx4 s[28:31], s[0:1], 96
    s_and_b32 s32, s2, 7          ; xcd
    s_lshr_b32 s33, s2, 3         ; slot
    s_lshr_b32 s34, s33, 4
    s_lshl_b32 s35, s32, 1
    s_add_u32 s35, s35, s34       ; grp
    s_and_b32 s36, s33, 15        ; i
    s_lshr_b32 s37, s35, 3        ; branch
    s_and_b32 s38, s35, 7         ; kvh
    v_lshrrev_b32 v10, 6, v0      ; wave
    v_and_b32 v1, 63, v0          ; lane
    v_readfirstlane_b32 s39, v10  ; w
    v_lshrrev_b32 v2, 4, v1       ; g
    v_and_b32 v3, 15, v1          ; c
    v_lshlrev_b32 v11, 4, v3      ; c*16
    v_lshlrev_b32 v4, 15, v2
    v_add_u32 v4, v4, v11
    v_lshlrev_b32 v7, 12, v2
    v_add_u32 v7, v7, v11
    v_lshrrev_b32 v5, 2, v3
    v_lshlrev_b32 v5, 8, v5       ; row*256
    v_lshlrev_b32 v10, 6, v2      ; g*64
    v_add_u32 v5, v5, v10
    v_and_b32 v10, 3, v1
    v_lshlrev_b32 v10, 4, v10
    v_add_u32 v5, v5, v10         ; K voffset
    v_lshlrev_b32 v6, 4, v1       ; V voffset = l*16
    v_lshlrev_b32 v10, 3, v2      ; x voffset = g*8
    s_and_b32 s96, s36, 3
    s_lshr_b32 s97, s36, 2        ; hh
    s_lshl_b32 s98, s38, 2
    s_add_u32 s98, s98, s97
    s_lshl_b32 s68, s96, 20
    s_lshl_b32 s99, s39, 17
    s_add_u32 s68, s68, s99
    s_lshl_b32 s99, s98, 8
    s_add_u32 s68, s68, s99
    s_add_u32 s69, s68, 8192
    s_add_u32 s70, s68, 16384
    s_add_u32 s71, s68, 24576
    s_lshl_b32 s75, s96, 8
    s_lshl_b32 s99, s39, 5
    s_add_u32 s75, s75, s99
    s_lshl_b32 s72, s38, 23
    s_add_u32 s72, s72, {28672*256}
    s_lshl_b32 s99, s36, 16
    s_add_u32 s72, s72, s99
    s_lshl_b32 s99, s39, 13
    s_add_u32 s72, s72, s99       ; K/V soffset
    s_add_u32 s73, s72, 4096
    s_lshl_b32 s74, s98, 17
    s_lshl_b32 s99, s39, 14
    s_add_u32 s74, s74, s99
    s_lshl_b32 s99, s96, 8
    s_add_u32 s74, s74, s99
    s_cmp_eq_u32 s37, 0
    s_mov_b32 s50, 0x400000
    s_mov_b32 s51, 0x00020000
    s_mov_b32 s62, 1024
    s_mov_b32 s63, 0x00020000
    s_mov_b32 s42, 0x4000000
    s_mov_b32 s43, 0x00020000
    s_waitcnt lgkmcnt(0)
    s_cselect_b32 s48, s10, s20   ; wq
    s_cselect_b32 s49, s11, s21
    s_mov_b32 s60, s4             ; x
    s_mov_b32 s61, s5
    buffer_load_dwordx2 v[8:9], v10, s[60:63], s75 offen
    """)
    for j in range(4):
        a(f"buffer_load_dwordx4 v[{48+4*j}:{51+4*j}], v4, s[48:51], s{68+j} offen nt")
    a(f"""
    s_cselect_b32 s40, s6, s16    ; K
    s_cselect_b32 s41, s7, s17
    """)
    if BAR0: a("s_barrier")
    def ldK(j):
        a(f"buffer_load_dwordx4 v[{64+4*j}:{67+4*j}], v5, s[40:43], s{72 + (j>>2)} offen offset:{(j&3)*1024} nt")
    def ldV(j):
        a(f"buffer_load_dwordx4 v[{96+4*j}:{99+4*j}], v6, s[44:47], s{72 + (j>>2)} offen offset:{(j&3)*1024} nt")
    def ldWO():
        for j in range(4):
            a(f"buffer_load_dwordx4 v[{48+4*j}:{51+4*j}], v7, s[52:55], s74 offen offset:{j*1024} nt")
    for j in range(NK1): ldK(j)
    a(f"""
    s_load_dword s64, s[30:31], 0     ; epoch
    s_cselect_b32 s44, s8, s18    ; V
    s_cselect_b32 s45, s9, s19
    s_mov_b32 s46, 0x4000000
    s_mov_b32 s47, 0x00020000
    s_cselect_b32 s52, s12, s22   ; wo
    s_cselect_b32 s53, s13, s23
    s_mov_b32 s54, 0x400000
    s_mov_b32 s55, 0x00020000
    s_mov_b32 s56, s30            ; ws
    s_mov_b32 s57, s31
    s_mov_b32 s58, 0x400000
    s_mov_b32 s59, 0x00020000
    s_mov_b32 s76, 0x05040100
    s_mov_b32 s77, 0x07060302
    v_lshlrev_b32 v11, 5, v3
    v_lshlrev_b32 v12, 4, v2
    v_add_u32 v11, v11, v12
    s_lshl_b32 s99, s39, 9
    v_add_u32 v11, s99, v11       ; v11 = w*512 + c*32 + g*16
    """)
    stamp()
    a(f"s_waitcnt vmcnt({4+NK1})")
    a("s_mov_b32 s96, 0x00010001\ns_mov_b32 s97, 0x00010001")
    for e in range(8):
        a(f"v_cndmask_b32 v{32+2*e}, 0, v8, s[96:97]")
        a(f"v_cndmask_b32 v{33+2*e}, 0, v9, s[96:97]")
        if e < 7: a("s_lshl_b64 s[96:97], s[96:97], 1")
    def wmm(acc):
        for e in range(8):
            pr = e >> 1; sel = "s76" if (e & 1) == 0 else "s77"
            a(f"v_perm_b32 v{16+2*e}, v{52+pr}, v{48+pr}, {sel}")
            a(f"v_perm_b32 v{17+2*e}, v{60+pr}, v{56+pr}, {sel}")
    def wmfma(acc):
        for e in range(8):
            c = "0" if e == 0 else f"v[{acc}:{acc+3}]"
            a(f"v_mfma_f32_16x16x16_bf16 v[{acc}:{acc+3}], v[{32+2*e}:{33+2*e}], v[{16+2*e}:{17+2*e}], {c}")
    a(f"s_waitcnt vmcnt({NK1})")
    stamp()
    wmm(12)
    wmfma(12)
    a(f"""
    s_waitcnt lgkmcnt(0)
    s_mul_i32 s66, s64, 0x9E3779B1
    s_add_u32 s66, s66, 0x3C6EF372   ; T
    s_mov_b32 s67, s66
    s_mov_b32 exec_hi, 0
    ds_write_b128 v11, v[12:15] offset:{L_QP}
    s_mov_b32 exec_hi, -1
    v_and_b32 v12, 7, v1
    v_lshlrev_b32 v13, 3, v12
    s_lshl_b32 s99, s39, 6
    v_add_u32 v13, s99, v13       ; w*64 + p*8
    v_lshlrev_b32 v12, 4, v12
    s_lshl_b32 s99, s39, 7
    v_add_u32 v12, s99, v12
    s_lshl_b32 s98, s35, 4
    s_add_u32 s98, s98, s36
    s_lshl_b32 s78, s98, 10
    s_add_u32 s78, s78, {QREC}
    v_mov_b32 v21, s66
    v_mov_b32 v23, s66
    s_waitcnt lgkmcnt(0)
    s_barrier
    """)
    for wp in range(8):
        a(f"ds_read_b64 v[{24+2*(wp&3)}:{25+2*(wp&3)}], v13 offset:{L_QP+wp*512}" if wp < 4 else
          f"ds_read_b64 v[{32+2*(wp&3)}:{33+2*(wp&3)}], v13 offset:{L_QP+wp*512}")
    a(f"""
    s_waitcnt lgkmcnt(4)
    v_pk_add_f32 v[24:25], v[24:25], v[26:27]
    v_pk_add_f32 v[28:29], v[28:29], v[30:31]
    s_waitcnt lgkmcnt(0)
    v_pk_add_f32 v[32:33], v[32:33], v[34:35]
    v_pk_add_f32 v[36:37], v[36:37], v[38:39]
    v_pk_add_f32 v[24:25], v[24:25], v[28:29]
    v_pk_add_f32 v[32:33], v[32:33], v[36:37]
    v_add_f32 v20, v24, v32
    v_add_f32 v22, v25, v33
    s_mov_b64 exec, 0xff
    buffer_store_dwordx4 v[20:23], v12, s[56:59], s78 offen sc1
    s_cmp_lg_u32 s39, 0
    s_cbranch_scc1 NOQFLAG
    s_lshl_b32 s99, s35, 11
    s_add_u32 s99, s99, {QFLAG}
    s_mov_b64 exec, 0xffff
    v_lshlrev_b32 v12, 7, v1
    s_lshl_b32 s98, s36, 2
    s_add_u32 s99, s99, s98
    buffer_store_dword v21, v12, s[56:59], s99 offen sc1
NOQFLAG:
    s_mov_b64 exec, -1
    """)
    stamp()
    if BARP: a("s_barrier")
    nafter = 0
    for j in range(NK1, 8): ldK(j)
    for j in range(NV1): ldV(j)
    def hintpoll(lbl, offreg):
        a(f"""
    s_cmp_lg_u32 s39, 0
    s_cbranch_scc1 {lbl}_B
    s_mov_b32 s99, {SPIN}
{lbl}:
    s_load_dwordx16 s[80:95], s[30:31], {offreg} glc
    s_sub_u32 s99, s99, 1
    s_cbranch_scc1 {lbl}_X
    s_waitcnt lgkmcnt(0)
        """)
        for k in range(8):
            a(f"s_xor_b64 s[{80+2*k}:{81+2*k}], s[{80+2*k}:{81+2*k}], s[66:67]")
        for k in range(1, 8):
            a(f"s_or_b64 s[80:81], s[80:81], s[{80+2*k}:{81+2*k}]")
        a(f"""
    s_cbranch_scc1 {lbl}
{lbl}_X:
    s_waitcnt lgkmcnt(0)
{lbl}_B:
    s_barrier
        """)
    a(f"""
    s_lshl_b32 s79, s35, 4
    s_add_u32 s79, s79, s36
    s_lshl_b32 s79, s79, 7
    s_add_u32 s79, s79, {QFLAG}
    v_lshrrev_b32 v12, 5, v1
    v_and_b32 v13, 31, v1
    v_lshlrev_b32 v14, 10, v12
    v_lshlrev_b32 v15, 4, v13
    v_add_u32 v14, v14, v15       ; v14 = Q voffset
    s_lshr_b32 s98, s39, 1        ; hq
    s_and_b32 s97, s39, 1         ; hf
    s_lshl_b32 s78, s35, 14
    s_lshl_b32 s99, s98, 12
    s_add_u32 s78, s78, s99
    s_lshl_b32 s99, s97, 9
    s_add_u32 s78, s78, s99
    s_add_u32 s78, s78, {QREC}
    v_lshlrev_b32 v15, 2, v13
    v_lshlrev_b32 v12, 1, v12
    v_add_u32 v15, v15, v12
    s_lshl_b32 s99, s98, 8
    s_lshl_b32 s97, s97, 7
    s_add_u32 s99, s99, s97
    v_add_u32 v15, s99, v15
    """)
    if hint1: hintpoll("QH", "s79")
    stamp()
    a(f"""
    buffer_load_dwordx4 v[16:19], v14, s[56:59], s78 offen sc1
    buffer_load_dwordx4 v[20:23], v14, s[56:59], s78 offen offset:2048 sc1
    """)
    if BAR1: a("s_barrier")
    for j in range(NV1, 8): ldV(j)
    nafter = 8 - NV1
    if WOPOS == "withV":
        ldWO(); nafter += 4
    a(f"""
    v_lshrrev_b32 v12, 2, v3
    v_lshlrev_b32 v12, 8, v12
    v_lshlrev_b32 v13, 6, v2
    v_add_u32 v12, v12, v13
    v_and_b32 v13, 3, v1
    v_lshlrev_b32 v13, 4, v13
    v_add_u32 v12, v12, v13
    s_mov_b32 s99, {SPIN}
    s_waitcnt vmcnt({nafter})
QCHK:
    v_cmpx_eq_u32 vcc, s66, v17
    v_cmpx_eq_u32 vcc, s66, v19
    v_cmpx_eq_u32 vcc, s66, v21
    v_cmpx_eq_u32 vcc, s66, v23
    s_cmp_eq_u64 exec, -1
    s_mov_b64 exec, -1
    s_cbranch_scc1 QOK
    s_sub_u32 s99, s99, 1
    s_cbranch_scc1 QOK
    buffer_load_dwordx4 v[16:19], v14, s[56:59], s78 offen sc1
    buffer_load_dwordx4 v[20:23], v14, s[56:59], s78 offen offset:2048 sc1
    s_waitcnt vmcnt(0)
    s_branch QCHK
QOK:
    v_add_f32 v16, v16, v20
    v_add_f32 v18, v18, v22
    v_permlane32_swap_b32 v16, v18
    v_add_f32 v16, v16, v18
    v_cvt_pk_bf16_f32 v16, v16, v16
    ds_write_b16 v15, v16 offset:{L_QB}
    """)
    stamp()
    if WOPOS == "afterQ":
        ldWO()
    a(f"""
    s_waitcnt lgkmcnt(0)
    s_barrier
    ds_read_b128 v[8:11], v12 offset:{L_QB}
    v_lshrrev_b32 v13, 2, v3
    v_lshlrev_b32 v13, 5, v13
    s_lshl_b32 s99, s39, 2
    v_add_u32 v14, s99, v13       ; h*32 + w*4
    s_waitcnt lgkmcnt(0)
    """)
    def Dj(j): return 16 + 4*j if j < 4 else 64 + 4*(j-4)
    for j in range(8):
        a(f"v_mfma_f32_16x16x32_bf16 v[{Dj(j)}:{Dj(j)+3}], v[{64+4*j}:{67+4*j}], v[8:11], 0")
    for half in range(2):
        js = range(4*half, 4*half+4)
        for j in js: a(f"v_mov_b32_dpp v{32+j}, v{Dj(j)} quad_perm:[0,0,0,0] row_mask:0xf bank_mask:0xf")
        for b in range(1, 4):
            for j in js: a(f"v_add_f32_dpp v{32+j}, v{Dj(j)+b}, v{32+j} quad_perm:[{b},{b},{b},{b}] row_mask:0xf bank_mask:0xf")
    a("s_mov_b32 s98, 0x3DB504F3")
    for u in range(4): a(f"v_cvt_pk_bf16_f32 v{40+u}, v{32+2*u}, v{33+2*u}")
    for u in range(4):
        a(f"v_lshlrev_b32 v{32+2*u}, 16, v{40+u}")
        a(f"v_and_b32 v{33+2*u}, 0xffff0000, v{40+u}")
    for j in range(8): a(f"v_mul_f32 v{32+j}, s98, v{32+j}")
    for u in range(4): a(f"v_cvt_pk_bf16_f32 v{40+u}, v{32+2*u}, v{33+2*u}")
    for u in range(4):
        a(f"v_lshlrev_b32 v{32+2*u}, 16, v{40+u}")
        a(f"v_and_b32 v{33+2*u}, 0xffff0000, v{40+u}")
    a(f"""
    v_max3_f32 v40, v32, v33, v34
    v_max3_f32 v41, v35, v36, v37
    v_max3_f32 v40, v40, v38, v39
    v_max_f32 v40, v40, v41
    v_mov_b32 v41, v40
    v_permlane32_swap_b32 v40, v41
    v_max_f32 v40, v40, v41
    v_mov_b32 v41, v40
    v_permlane16_swap_b32 v40, v41
    v_max_f32 v40, v40, v41
    s_mov_b64 exec, 0x1111
    ds_write_b32 v14, v40 offset:{L_MX}
    s_mov_b64 exec, -1
    s_waitcnt lgkmcnt(0)
    s_barrier
    ds_read_b128 v[40:43], v13 offset:{L_MX}
    ds_read_b128 v[44:47], v13 offset:{L_MX+16}
    s_mov_b32 s98, 0x3FB8AA3B     ; log2(e)
    s_waitcnt lgkmcnt(0)
    v_max3_f32 v40, v40, v41, v42
    v_max3_f32 v44, v44, v45, v46
    v_max3_f32 v40, v40, v43, v47
    v_max_f32 v10, v40, v44
    """)
    for j in range(8): a(f"v_sub_f32 v{32+j}, v{32+j}, v10")
    for j in range(8): a(f"v_mul_f32 v{32+j}, s98, v{32+j}")
    for j in range(8): a(f"v_exp_f32 v{32+j}, v{32+j}")
    a(f"""
    v_add_f32 v40, v32, v33
    v_add_f32 v41, v34, v35
    v_add_f32 v42, v36, v37
    v_add_f32 v43, v38, v39
    v_add_f32 v40, v40, v41
    v_add_f32 v42, v42, v43
    v_add_f32 v40, v40, v42
    v_cvt_pk_bf16_f32 v24, v32, v33
    v_cvt_pk_bf16_f32 v25, v34, v35
    v_cvt_pk_bf16_f32 v26, v36, v37
    v_cvt_pk_bf16_f32 v27, v38, v39
    v_mov_b32 v41, v40
    v_permlane32_swap_b32 v40, v41
    v_add_f32 v40, v40, v41
    v_mov_b32 v41, v40
    v_permlane16_swap_b32 v40, v41
    v_add_f32 v40, v40, v41
    s_mov_b64 exec, 0x1111
    ds_write_b32 v14, v40 offset:{L_LS}
    s_mov_b64 exec, -1
    s_mov_b32 s96, 0x11111111
    s_mov_b32 s97, 0x11111111
    """)
    for v in range(4):
        for u in range(4):
            a(f"v_cndmask_b32 v{32+4*v+u}, 0, v{24+u}, s[96:97]")
        if v < 3: a("s_lshl_b64 s[96:97], s[96:97], 1")
    stamp()
    if WOPOS == "afterP": ldWO()
    a(f"""
    v_lshlrev_b32 v11, 9, v2
    v_lshlrev_b32 v12, 5, v3
    v_add_u32 v11, v11, v12
    s_lshl_b32 s99, s39, 11
    v_add_u32 v11, s99, v11
    v_and_b32 v12, 31, v1
    v_lshlrev_b32 v13, 3, v12
    s_lshl_b32 s99, s39, 8
    v_add_u32 v13, s99, v13
    v_lshlrev_b32 v12, 4, v12
    s_lshl_b32 s98, s35, 4
    s_add_u32 s98, s98, s36
    s_lshl_b32 s78, s98, 12
    s_lshl_b32 s99, s39, 9
    s_add_u32 s78, s78, s99
    s_add_u32 s78, s78, {OREC}
    s_lshr_b32 s98, s39, 1        ; h
    s_lshl_b32 s99, s98, 2
    v_readlane_b32 s65, v10, s99
    s_lshl_b32 s99, s98, 5
    v_mov_b32 v14, s99
    """)
    wo_after = 4 if WOPOS in ("afterQ", "withV", "afterP") else 0
    def pv(half):
        V0 = 96 + 16*half; B0 = 64 + 16*half
        for e in range(8):
            pr = e >> 1; sel = "s76" if (e & 1) == 0 else "s77"
            a(f"v_perm_b32 v{B0+2*e}, v{V0+4+pr}, v{V0+pr}, {sel}")
            a(f"v_perm_b32 v{B0+2*e+1}, v{V0+12+pr}, v{V0+8+pr}, {sel}")
        for e in [0, 4, 1, 5, 2, 6, 3, 7]:
            acc = 16 if e < 4 else 20
            v = e & 3
            c = "0" if (half == 0 and v == 0) else f"v[{acc}:{acc+3}]"
            a(f"v_mfma_f32_16x16x16_bf16 v[{acc}:{acc+3}], v[{32+4*v+2*half}:{33+4*v+2*half}], v[{B0+2*e}:{B0+2*e+1}], {c}")
    a(f"s_waitcnt vmcnt({4+wo_after})")
    pv(0)
    a(f"s_waitcnt vmcnt({wo_after})")
    stamp()
    if WOPOS == "afterV": ldWO()
    pv(1)
    a(f"""
    ds_write_b128 v11, v[16:19] offset:{L_OP}
    ds_write_b128 v11, v[20:23] offset:{L_OP+16}
    v_mov_b32 v21, s66
    v_mov_b32 v23, s66
    s_waitcnt lgkmcnt(0)
    s_barrier
    """)
    for wp in range(8):
        a(f"ds_read_b64 v[{24+2*wp}:{25+2*wp}], v13 offset:{L_OP+wp*2048}")
    a(f"""
    ds_read_b128 v[40:43], v14 offset:{L_LS}
    ds_read_b128 v[44:47], v14 offset:{L_LS+16}
    s_waitcnt lgkmcnt(6)
    v_pk_add_f32 v[24:25], v[24:25], v[26:27]
    v_pk_add_f32 v[28:29], v[28:29], v[30:31]
    s_waitcnt lgkmcnt(2)
    v_pk_add_f32 v[32:33], v[32:33], v[34:35]
    v_pk_add_f32 v[36:37], v[36:37], v[38:39]
    v_pk_add_f32 v[24:25], v[24:25], v[28:29]
    v_pk_add_f32 v[32:33], v[32:33], v[36:37]
    v_add_f32 v20, v24, v32
    v_add_f32 v22, v25, v33
    s_mov_b32 exec_hi, 0
    buffer_store_dwordx4 v[20:23], v12, s[56:59], s78 offen sc1
    s_and_b32 s99, s39, 1
    s_cmp_lg_u32 s99, 0
    s_cbranch_scc1 NOSTAT
    s_waitcnt lgkmcnt(0)
    v_pk_add_f32 v[40:41], v[40:41], v[42:43]
    v_pk_add_f32 v[44:45], v[44:45], v[46:47]
    v_pk_add_f32 v[40:41], v[40:41], v[44:45]
    v_mov_b32 v24, s65
    v_mov_b32 v25, s66
    v_add_f32 v26, v40, v41
    v_mov_b32 v27, s66
    s_lshl_b32 s98, s35, 2
    s_lshr_b32 s99, s39, 1
    s_add_u32 s98, s98, s99
    s_lshl_b32 s97, s98, 8
    s_lshl_b32 s99, s36, 4
    s_add_u32 s97, s97, s99
    s_add_u32 s97, s97, {OSTAT}
    s_lshl_b32 s98, s98, 9
    s_lshl_b32 s99, s36, 2
    s_add_u32 s98, s98, s99
    s_add_u32 s98, s98, {OFLAG}
    v_lshlrev_b32 v28, 7, v1
    s_mov_b64 exec, 1
    buffer_store_dwordx4 v[24:27], v28, s[56:59], s97 offen sc1
    s_mov_b64 exec, 15
    buffer_store_dword v25, v28, s[56:59], s98 offen sc1
NOSTAT:
    s_mov_b64 exec, -1
    s_waitcnt lgkmcnt(0)
    """)
    stamp()
    if WOPOS == "afterO":
        ldWO()
    a(f"""
    s_lshr_b32 s98, s36, 2        ; hh
    s_lshl_b32 s99, s35, 2
    s_add_u32 s98, s98, s99       ; grp*4+hh
    s_lshl_b32 s79, s35, 4
    s_add_u32 s79, s79, s36
    s_lshl_b32 s79, s79, 7
    s_add_u32 s79, s79, {OFLAG}
    s_lshl_b32 s97, s98, 8
    s_add_u32 s97, s97, {OSTAT}
    s_lshl_b32 s78, s35, 16
    s_lshr_b32 s98, s36, 2
    s_lshl_b32 s98, s98, 10
    s_add_u32 s78, s78, s98
    s_lshl_b32 s98, s39, 7
    s_add_u32 s78, s78, s98
    s_add_u32 s78, s78, {OREC}
    v_lshlrev_b32 v12, 12, v3
    v_lshlrev_b32 v13, 5, v2
    v_add_u32 v12, v12, v13
    v_lshlrev_b32 v13, 4, v3
    v_lshlrev_b32 v11, 5, v3
    v_lshlrev_b32 v14, 4, v2
    v_add_u32 v11, v11, v14
    s_lshl_b32 s99, s39, 9
    v_add_u32 v11, s99, v11
    """)
    if hint2: hintpoll("OH", "s79")
    stamp()
    a(f"""
    buffer_load_dwordx4 v[64:67], v12, s[56:59], s78 offen sc1
    buffer_load_dwordx4 v[68:71], v12, s[56:59], s78 offen offset:16 sc1
    buffer_load_dwordx4 v[72:75], v13, s[56:59], s97 offen sc1
    s_waitcnt vmcnt(3)
    """)
    wmm(12)
    a(f"""
    s_mov_b32 s99, {SPIN}
    s_mov_b32 s98, 0x3FB8AA3B
    s_waitcnt vmcnt(0)
OCHK:
    v_cmpx_eq_u32 vcc, s66, v65
    v_cmpx_eq_u32 vcc, s66, v67
    v_cmpx_eq_u32 vcc, s66, v69
    v_cmpx_eq_u32 vcc, s66, v71
    v_cmpx_eq_u32 vcc, s66, v73
    v_cmpx_eq_u32 vcc, s66, v75
    s_cmp_eq_u64 exec, -1
    s_mov_b64 exec, -1
    s_cbranch_scc1 OOK
    s_sub_u32 s99, s99, 1
    s_cbranch_scc1 OOK
    buffer_load_dwordx4 v[64:67], v12, s[56:59], s78 offen sc1
    buffer_load_dwordx4 v[68:71], v12, s[56:59], s78 offen offset:16 sc1
    buffer_load_dwordx4 v[72:75], v13, s[56:59], s97 offen sc1
    s_waitcnt vmcnt(0)
    s_branch OCHK
OOK:
    s_nop 4
    v_max_f32_dpp v76, v72, v72 row_ror:8 row_mask:0xf bank_mask:0xf
    v_max_f32_dpp v76, v76, v76 row_ror:4 row_mask:0xf bank_mask:0xf
    v_max_f32_dpp v76, v76, v76 row_ror:2 row_mask:0xf bank_mask:0xf
    v_max_f32_dpp v76, v76, v76 row_ror:1 row_mask:0xf bank_mask:0xf
    v_sub_f32 v76, v72, v76
    v_mul_f32 v76, s98, v76
    v_exp_f32 v76, v76
    v_mul_f32 v80, v76, v74       ; f*l
    v_mul_f32 v81, v76, v64
    v_mul_f32 v82, v76, v66
    v_mul_f32 v83, v76, v68
    v_mul_f32 v84, v76, v70
    """)
    for r in (8, 4, 2, 1):
        for k in range(5):
            a(f"v_add_f32_dpp v{80+k}, v{80+k}, v{80+k} row_ror:{r} row_mask:0xf bank_mask:0xf")
    a(f"""
    v_rcp_f32 v80, v80
    v_mul_f32 v81, v81, v80
    v_mul_f32 v82, v82, v80
    v_mul_f32 v83, v83, v80
    v_mul_f32 v84, v84, v80
    v_cvt_pk_bf16_f32 v8, v81, v82
    v_cvt_pk_bf16_f32 v9, v83, v84
    s_mov_b32 s96, 0x00010001
    s_mov_b32 s97, 0x00010001
    """)
    for e in range(8):
        a(f"v_cndmask_b32 v{32+2*e}, 0, v8, s[96:97]")
        a(f"v_cndmask_b32 v{33+2*e}, 0, v9, s[96:97]")
        if e < 7: a("s_lshl_b64 s[96:97], s[96:97], 1")
    wmfma(12)
    a(f"""
    s_mov_b32 exec_hi, 0
    ds_write_b128 v11, v[12:15] offset:{L_QP}
    s_mov_b32 exec_hi, -1
    v_lshlrev_b32 v13, 3, v1      ; l*8
    v_lshlrev_b32 v12, 4, v1      ; l*16
    v_mov_b32 v21, s66
    v_mov_b32 v23, s66
    s_waitcnt lgkmcnt(0)
    s_barrier
    """)
    if ts:
        a(f"""
    s_memrealtime s[96:97]
    s_waitcnt lgkmcnt(0)
    s_add_u32 s84, s30, {TSOFF + (1<<20)}
    s_addc_u32 s85, s31, 0
    s_mov_b32 s86, 0x100000
    s_mov_b32 s87, 0x00020000
    s_lshl_b32 s88, s2, 3
    s_add_u32 s88, s88, s39
    s_lshl_b32 s88, s88, 7
    v_mov_b32 v4, 0
    s_mov_b64 exec, 1
        """)
        regs = [100] + [4+2*k for k in range(stampn[0])] + [96]
        for k, r in enumerate(regs):
            a(f"v_mov_b32 v2, s{r}")
            a(f"v_mov_b32 v3, s{r+1}")
            a(f"buffer_store_dwordx2 v[2:3], v4, s[84:87], s88 offen offset:{k*8}")
            a("s_nop 1")
        a("s_mov_b64 exec, -1")
    a(f"""
    s_cmp_eq_u32 s39, 0
    s_cbranch_scc1 FPUB
    s_cmp_lg_u32 s39, 1
    s_cbranch_scc1 END
    s_cmp_lt_u32 s2, 32
    s_cbranch_scc1 FINAL
    s_branch END
FPUB:
    """)
    for wp in range(8):
        a(f"ds_read_b64 v[{24+2*wp}:{25+2*wp}], v13 offset:{L_QP+wp*512}")
    a(f"""
    s_and_b32 s98, s36, 3
    s_lshl_b32 s98, s98, 6
    s_lshl_b32 s99, s35, 2
    s_add_u32 s98, s98, s99
    s_lshr_b32 s99, s36, 2
    s_add_u32 s98, s98, s99
    s_lshl_b32 s98, s98, 10
    s_add_u32 s98, s98, {FREC}
    s_waitcnt lgkmcnt(4)
    v_pk_add_f32 v[24:25], v[24:25], v[26:27]
    v_pk_add_f32 v[28:29], v[28:29], v[30:31]
    s_waitcnt lgkmcnt(0)
    v_pk_add_f32 v[32:33], v[32:33], v[34:35]
    v_pk_add_f32 v[36:37], v[36:37], v[38:39]
    v_pk_add_f32 v[24:25], v[24:25], v[28:29]
    v_pk_add_f32 v[32:33], v[32:33], v[36:37]
    v_add_f32 v20, v24, v32
    v_add_f32 v22, v25, v33
    buffer_store_dwordx4 v[20:23], v12, s[56:59], s98 offen sc1
    """)
    nst = stampn[0]
    def dump_ts(slot0, extra=None):
        a(f"""
    s_memrealtime s[96:97]
    s_waitcnt lgkmcnt(0)
    s_add_u32 s84, s30, {TSOFF}
    s_addc_u32 s85, s31, 0
    s_mov_b32 s86, 0x100000
    s_mov_b32 s87, 0x00020000
    s_lshl_b32 s88, s2, 9
    v_mov_b32 v1, 0
    s_mov_b64 exec, 1
        """)
        regs = [100] + [4+2*k for k in range(nst)] + [96]
        for k, r in enumerate(regs):
            a(f"v_mov_b32 v2, s{r}")
            a(f"v_mov_b32 v3, s{r+1}")
            a(f"buffer_store_dwordx2 v[2:3], v1, s[84:87], s88 offen offset:{(slot0+k)*8}")
            a("s_nop 1")
        return len(regs)
    if ts:
        n = dump_ts(0)
        a(f"""
    v_mov_b32 v2, {n+1}
    v_mov_b32 v3, 0
    buffer_store_dwordx2 v[2:3], v1, s[84:87], s88 offen offset:{63*8}
    s_cmp_lt_u32 s2, 32
    s_cbranch_scc1 END
    v_mov_b32 v2, s96
    v_mov_b32 v3, s97
    buffer_store_dwordx2 v[2:3], v1, s[84:87], s88 offen offset:{n*8}
        """)
    a(f"""
    s_branch END
FINAL:
    s_mov_b32 s44, s24            ; gate_w
    s_mov_b32 s45, s25
    s_mov_b32 s46, 1024
    s_mov_b32 s47, 0x00020000
    v_lshlrev_b32 v12, 4, v1      ; l*16
    buffer_load_dwordx4 v[64:67], v12, s[60:63], 0 offen
    buffer_load_dwordx4 v[68:71], v12, s[44:47], 0 offen
    v_lshrrev_b32 v13, 3, v1
    v_lshlrev_b32 v13, 10, v13
    v_and_b32 v14, 7, v1
    v_lshlrev_b32 v14, 4, v14
    v_add_u32 v13, v13, v14
    s_lshr_b32 s98, s2, 3
    s_lshl_b32 s98, s98, 16
    s_and_b32 s99, s2, 7
    s_lshl_b32 s99, s99, 7
    s_add_u32 s98, s98, s99
    s_add_u32 s80, s98, {FREC}
    """)
    for j in range(1, 8): a(f"s_add_u32 s{80+j}, s80, {j*8192}")
    def recloads():
        for j in range(8):
            a(f"buffer_load_dwordx4 v[{96+4*j}:{99+4*j}], v13, s[56:59], s{80+j} offen sc1")
    recloads()
    a("s_waitcnt vmcnt(8)")
    for k in range(4):
        a(f"v_lshlrev_b32 v{72+2*k}, 16, v{64+k}")
        a(f"v_and_b32 v{73+2*k}, 0xffff0000, v{64+k}")
        a(f"v_lshlrev_b32 v{80+2*k}, 16, v{68+k}")
        a(f"v_and_b32 v{81+2*k}, 0xffff0000, v{68+k}")
    for k in range(8): a(f"v_mul_f32 v{72+k}, v{72+k}, v{80+k}")
    for k in range(4): a(f"v_cvt_pk_bf16_f32 v{80+k}, v{72+2*k}, v{73+2*k}")
    for k in range(4):
        a(f"v_lshlrev_b32 v{72+2*k}, 16, v{80+k}")
        a(f"v_and_b32 v{73+2*k}, 0xffff0000, v{80+k}")
    a(f"""
    v_add_f32 v72, v72, v73
    v_add_f32 v74, v74, v75
    v_add_f32 v76, v76, v77
    v_add_f32 v78, v78, v79
    v_add_f32 v72, v72, v74
    v_add_f32 v76, v76, v78
    v_add_f32 v72, v72, v76
    v_add_f32_dpp v72, v72, v72 row_ror:8 row_mask:0xf bank_mask:0xf
    v_add_f32_dpp v72, v72, v72 row_ror:4 row_mask:0xf bank_mask:0xf
    v_add_f32_dpp v72, v72, v72 row_ror:2 row_mask:0xf bank_mask:0xf
    v_add_f32_dpp v72, v72, v72 row_ror:1 row_mask:0xf bank_mask:0xf
    v_mov_b32 v73, v72
    v_permlane16_swap_b32 v72, v73
    v_add_f32 v72, v72, v73
    v_mov_b32 v73, v72
    v_permlane32_swap_b32 v72, v73
    v_add_f32 v72, v72, v73
    v_cvt_pk_bf16_f32 v72, v72, v72
    v_lshlrev_b32 v72, 16, v72          ; bf16(sum)
    v_mul_f32 v72, 0xBFB8AA3B, v72      ; -log2e * s
    v_exp_f32 v72, v72
    v_add_f32 v72, 1.0, v72
    v_rcp_f32 v72, v72
    v_cvt_pk_bf16_f32 v72, v72, v72
    v_lshlrev_b32 v72, 16, v72          ; g (bf16)
    v_sub_f32 v73, 1.0, v72
    v_cvt_pk_bf16_f32 v73, v73, v73
    v_lshlrev_b32 v73, 16, v73          ; 1-g (bf16)
    s_mov_b32 s96, 0
    s_mov_b32 s97, -1
    v_cndmask_b32 v72, v72, v73, s[96:97]
    v_and_b32 v14, 7, v1
    v_lshlrev_b32 v14, 2, v14
    v_lshrrev_b32 v15, 4, v1
    v_and_b32 v15, 1, v15
    v_lshlrev_b32 v15, 1, v15
    v_add_u32 v14, v14, v15
    s_lshl_b32 s98, s2, 5
    s_mov_b32 s44, s26
    s_mov_b32 s45, s27
    s_mov_b32 s99, {SPIN}
    s_waitcnt vmcnt(0)
FCHK:
    """)
    for j in range(8):
        a(f"v_cmpx_eq_u32 vcc, s66, v{97+4*j}")
        a(f"v_cmpx_eq_u32 vcc, s66, v{99+4*j}")
    a(f"""
    s_cmp_eq_u64 exec, -1
    s_mov_b64 exec, -1
    s_cbranch_scc1 FOK
    s_sub_u32 s99, s99, 1
    s_cbranch_scc1 FOK
    """)
    recloads()
    a(f"""
    s_waitcnt vmcnt(0)
    s_branch FCHK
FOK:
    v_add_f32 v96, v96, v100
    v_add_f32 v98, v98, v102
    v_add_f32 v104, v104, v108
    v_add_f32 v106, v106, v110
    v_add_f32 v112, v112, v116
    v_add_f32 v114, v114, v118
    v_add_f32 v120, v120, v124
    v_add_f32 v122, v122, v126
    v_add_f32 v96, v96, v104      ; A0
    v_add_f32 v112, v112, v120    ; B0
    v_add_f32 v98, v98, v106      ; A1
    v_add_f32 v114, v114, v122    ; B1
    v_permlane32_swap_b32 v96, v112
    v_permlane32_swap_b32 v98, v114
    v_add_f32 v96, v96, v112
    v_add_f32 v98, v98, v114
    v_permlane16_swap_b32 v96, v98
    v_add_f32 v96, v96, v98
    v_add_f32_dpp v96, v96, v96 row_ror:8 row_mask:0xf bank_mask:0xf
    v_cvt_pk_bf16_f32 v96, v96, v96
    v_lshlrev_b32 v96, 16, v96
    v_mul_f32 v96, v96, v72
    v_cvt_pk_bf16_f32 v96, v96, v96
    v_lshlrev_b32 v96, 16, v96
    v_mov_b32 v97, v96
    v_permlane32_swap_b32 v96, v97
    v_add_f32 v96, v96, v97
    v_cvt_pk_bf16_f32 v96, v96, v96
    s_mov_b32 exec_lo, 0x00ff00ff
    s_mov_b32 exec_hi, 0
    buffer_store_short v96, v14, s[44:47], s98 offen
    s_cmp_lg_u32 s2, 0
    s_cbranch_scc1 NOEPOCH
    s_add_u32 s64, s64, 1
    v_mov_b32 v2, s64
    v_mov_b32 v3, 0
    s_mov_b64 exec, 1
    buffer_store_dword v2, v3, s[56:59], 0 offen
NOEPOCH:
    """)
    if ts:
        a(f"""
    s_waitcnt vmcnt(0)
    s_memrealtime s[96:97]
    s_waitcnt lgkmcnt(0)
    s_add_u32 s84, s30, {TSOFF}
    s_addc_u32 s85, s31, 0
    s_mov_b32 s86, 0x100000
    s_mov_b32 s87, 0x00020000
    s_lshl_b32 s88, s2, 9
    v_mov_b32 v1, 0
    s_mov_b64 exec, 1
    v_mov_b32 v2, s96
    v_mov_b32 v3, s97
    buffer_store_dwordx2 v[2:3], v1, s[84:87], s88 offen offset:{(nst+2)*8}
        """)
    a("END:")
    open(name, "w").write(a.text(256, 512, LDS_BYTES, 128))
    mk.build(name)
    return a

if __name__ == "__main__":
    kw = {}
    name = sys.argv[1]
    for x in sys.argv[2:]:
        k, v = x.split("=")
        kw[k] = int(v) if v.lstrip("-").isdigit() else v
    a = gen(name, **kw)
    print("nops inserted:", a.nops, "lines:", len(a.lines))
```

```python
import sys
from asmlib import *
import mk

QFLAG = 0x8000
OFLAG = 0x50000
OSTAT = 0x4000
QREC  = 0x10000
FREC  = 0x80000
OREC  = 0x100000
TSOFF = 64 << 20
L_QP = 0
L_QB = 4096
L_MX = 5120
L_LS = 5248
L_OP = 8192
LDS_BYTES = 24576
SPIN = 100000

def gen(name, ts=False, NK1=8, NV1=4, WOPOS="afterQ", hint1=True, hint2=True, BAR0=1, BAR1=1, BARP=1):
    a = Asm()
    stampn = [0]
    def stamp():
        if not ts: return
        k = stampn[0]; stampn[0] += 1
        assert k < 10
        a(f"s_memrealtime s[{4+2*k}:{5+2*k}]")
    a(f"""
    s_cmp_ge_u32 s2, 256
    s_cbranch_scc1 END
    """)
    if ts: a("s_memrealtime s[100:101]")
    a(f"""
    s_load_dwordx16 s[4:19], s[0:1], 0
    s_load_dwordx8 s[20:27], s[0:1], 64
    s_load_dwordx4 s[28:31], s[0:1], 96
    s_and_b32 s32, s2, 7          ; xcd
    s_lshr_b32 s33, s2, 3         ; slot
    s_lshr_b32 s34, s33, 4
    s_lshl_b32 s35, s32, 1
    s_add_u32 s35, s35, s34       ; grp
    s_and_b32 s36, s33, 15        ; i
    s_lshr_b32 s37, s35, 3        ; branch
    s_and_b32 s38, s35, 7         ; kvh
    v_lshrrev_b32 v10, 6, v0      ; wave
    v_and_b32 v1, 63, v0          ; lane
    v_readfirstlane_b32 s39, v10  ; w
    v_lshrrev_b32 v2, 4, v1       ; g
    v_and_b32 v3, 15, v1          ; c
    v_lshlrev_b32 v11, 4, v3      ; c*16
    v_lshlrev_b32 v4, 15, v2
    v_add_u32 v4, v4, v11
    v_lshlrev_b32 v7, 12, v2
    v_add_u32 v7, v7, v11
    v_lshrrev_b32 v5, 2, v3
    v_lshlrev_b32 v5, 8, v5       ; row*256
    v_lshlrev_b32 v10, 6, v2      ; g*64
    v_add_u32 v5, v5, v10
    v_and_b32 v10, 3, v1
    v_lshlrev_b32 v10, 4, v10
    v_add_u32 v5, v5, v10         ; K voffset
    v_lshlrev_b32 v6, 4, v1       ; V voffset = l*16
    v_lshlrev_b32 v10, 3, v2      ; x voffset = g*8
    s_and_b32 s96, s36, 3
    s_lshr_b32 s97, s36, 2        ; hh
    s_lshl_b32 s98, s38, 2
    s_add_u32 s98, s98, s97
    s_lshl_b32 s68, s96, 20
    s_lshl_b32 s99, s39, 17
    s_add_u32 s68, s68, s99
    s_lshl_b32 s99, s98, 8
    s_add_u32 s68, s68, s99
    s_add_u32 s69, s68, 8192
    s_add_u32 s70, s68, 16384
    s_add_u32 s71, s68, 24576
    s_lshl_b32 s75, s96, 8
    s_lshl_b32 s99, s39, 5
    s_add_u32 s75, s75, s99
    s_lshl_b32 s72, s38, 23
    s_add_u32 s72, s72, {28672*256}
    s_lshl_b32 s99, s36, 16
    s_add_u32 s72, s72, s99
    s_lshl_b32 s99, s39, 13
    s_add_u32 s72, s72, s99       ; K/V soffset
    s_add_u32 s73, s72, 4096
    s_lshl_b32 s74, s98, 17
    s_lshl_b32 s99, s39, 14
    s_add_u32 s74, s74, s99
    s_lshl_b32 s99, s96, 8
    s_add_u32 s74, s74, s99
    s_cmp_eq_u32 s37, 0
    s_mov_b32 s50, 0x400000
    s_mov_b32 s51, 0x00020000
    s_mov_b32 s62, 1024
    s_mov_b32 s63, 0x00020000
    s_mov_b32 s42, 0x4000000
    s_mov_b32 s43, 0x00020000
    s_waitcnt lgkmcnt(0)
    s_cselect_b32 s48, s10, s20   ; wq
    s_cselect_b32 s49, s11, s21
    s_mov_b32 s60, s4             ; x
    s_mov_b32 s61, s5
    buffer_load_dwordx2 v[8:9], v10, s[60:63], s75 offen
    """)
    for j in range(4):
        a(f"buffer_load_dwordx4 v[{48+4*j}:{51+4*j}], v4, s[48:51], s{68+j} offen nt")
    a(f"""
    s_cselect_b32 s40, s6, s16    ; K
    s_cselect_b32 s41, s7, s17
    """)
    if BAR0: a("s_barrier")
    def ldK(j):
        a(f"buffer_load_dwordx4 v[{64+4*j}:{67+4*j}], v5, s[40:43], s{72 + (j>>2)} offen offset:{(j&3)*1024} nt")
    def ldV(j):
        a(f"buffer_load_dwordx4 v[{96+4*j}:{99+4*j}], v6, s[44:47], s{72 + (j>>2)} offen offset:{(j&3)*1024} nt")
    def ldWO():
        for j in range(4):
            a(f"buffer_load_dwordx4 v[{48+4*j}:{51+4*j}], v7, s[52:55], s74 offen offset:{j*1024} nt")
    for j in range(NK1): ldK(j)
    a(f"""
    s_load_dword s64, s[30:31], 0     ; epoch
    s_cselect_b32 s44, s8, s18    ; V
    s_cselect_b32 s45, s9, s19
    s_mov_b32 s46, 0x4000000
    s_mov_b32 s47, 0x00020000
    s_cselect_b32 s52, s12, s22   ; wo
    s_cselect_b32 s53, s13, s23
    s_mov_b32 s54, 0x400000
    s_mov_b32 s55, 0x00020000
    s_mov_b32 s56, s30            ; ws
    s_mov_b32 s57, s31
    s_mov_b32 s58, 0x400000
    s_mov_b32 s59, 0x00020000
    s_mov_b32 s76, 0x05040100
    s_mov_b32 s77, 0x07060302
    v_lshlrev_b32 v11, 5, v3
    v_lshlrev_b32 v12, 4, v2
    v_add_u32 v11, v11, v12
    s_lshl_b32 s99, s39, 9
    v_add_u32 v11, s99, v11       ; v11 = w*512 + c*32 + g*16
    """)
    stamp()
    a(f"s_waitcnt vmcnt({4+NK1})")
    a("s_mov_b32 s96, 0x00010001\ns_mov_b32 s97, 0x00010001")
    for e in range(8):
        a(f"v_cndmask_b32 v{32+2*e}, 0, v8, s[96:97]")
        a(f"v_cndmask_b32 v{33+2*e}, 0, v9, s[96:97]")
        if e < 7: a("s_lshl_b64 s[96:97], s[96:97], 1")
    def wmm(acc):
        for e in range(8):
            pr = e >> 1; sel = "s76" if (e & 1) == 0 else "s77"
            a(f"v_perm_b32 v{16+2*e}, v{52+pr}, v{48+pr}, {sel}")
            a(f"v_perm_b32 v{17+2*e}, v{60+pr}, v{56+pr}, {sel}")
    def wmfma(acc):
        for e in range(8):
            c = "0" if e == 0 else f"v[{acc}:{acc+3}]"
            a(f"v_mfma_f32_16x16x16_bf16 v[{acc}:{acc+3}], v[{32+2*e}:{33+2*e}], v[{16+2*e}:{17+2*e}], {c}")
    a(f"s_waitcnt vmcnt({NK1})")
    stamp()
    wmm(12)
    wmfma(12)
    a(f"""
    s_waitcnt lgkmcnt(0)
    s_mul_i32 s66, s64, 0x9E3779B1
    s_add_u32 s66, s66, 0x3C6EF372   ; T
    s_mov_b32 s67, s66
    s_mov_b32 exec_hi, 0
    ds_write_b128 v11, v[12:15] offset:{L_QP}
    s_mov_b32 exec_hi, -1
    v_and_b32 v12, 7, v1
    v_lshlrev_b32 v13, 3, v12
    s_lshl_b32 s99, s39, 6
    v_add_u32 v13, s99, v13       ; w*64 + p*8
    v_lshlrev_b32 v12, 4, v12
    s_lshl_b32 s99, s39, 7
    v_add_u32 v12, s99, v12
    s_lshl_b32 s98, s35, 4
    s_add_u32 s98, s98, s36
    s_lshl_b32 s78, s98, 10
    s_add_u32 s78, s78, {QREC}
    v_mov_b32 v21, s66
    v_mov_b32 v23, s66
    s_waitcnt lgkmcnt(0)
    s_barrier
    """)
    for wp in range(8):
        a(f"ds_read_b64 v[{24+2*(wp&3)}:{25+2*(wp&3)}], v13 offset:{L_QP+wp*512}" if wp < 4 else
          f"ds_read_b64 v[{32+2*(wp&3)}:{33+2*(wp&3)}], v13 offset:{L_QP+wp*512}")
    a(f"""
    s_waitcnt lgkmcnt(4)
    v_pk_add_f32 v[24:25], v[24:25], v[26:27]
    v_pk_add_f32 v[28:29], v[28:29], v[30:31]
    s_waitcnt lgkmcnt(0)
    v_pk_add_f32 v[32:33], v[32:33], v[34:35]
    v_pk_add_f32 v[36:37], v[36:37], v[38:39]
    v_pk_add_f32 v[24:25], v[24:25], v[28:29]
    v_pk_add_f32 v[32:33], v[32:33], v[36:37]
    v_add_f32 v20, v24, v32
    v_add_f32 v22, v25, v33
    s_mov_b64 exec, 0xff
    buffer_store_dwordx4 v[20:23], v12, s[56:59], s78 offen sc1
    s_cmp_lg_u32 s39, 0
    s_cbranch_scc1 NOQFLAG
    s_lshl_b32 s99, s35, 11
    s_add_u32 s99, s99, {QFLAG}
    s_mov_b64 exec, 0xffff
    v_lshlrev_b32 v12, 7, v1
    s_lshl_b32 s98, s36, 2
    s_add_u32 s99, s99, s98
    buffer_store_dword v21, v12, s[56:59], s99 offen sc1
NOQFLAG:
    s_mov_b64 exec, -1
    """)
    stamp()
    if BARP: a("s_barrier")
    nafter = 0
    for j in range(NK1, 8): ldK(j)
    for j in range(NV1): ldV(j)
    def hintpoll(lbl, offreg):
        a(f"""
    s_cmp_lg_u32 s39, 0
    s_cbranch_scc1 {lbl}_B
    s_mov_b32 s99, {SPIN}
{lbl}:
    s_load_dwordx16 s[80:95], s[30:31], {offreg} glc
    s_sub_u32 s99, s99, 1
    s_cbranch_scc1 {lbl}_X
    s_waitcnt lgkmcnt(0)
        """)
        for k in range(8):
            a(f"s_xor_b64 s[{80+2*k}:{81+2*k}], s[{80+2*k}:{81+2*k}], s[66:67]")
        for k in range(1, 8):
            a(f"s_or_b64 s[80:81], s[80:81], s[{80+2*k}:{81+2*k}]")
        a(f"""
    s_cbranch_scc1 {lbl}
{lbl}_X:
    s_waitcnt lgkmcnt(0)
{lbl}_B:
    s_barrier
        """)
    a(f"""
    s_lshl_b32 s79, s35, 4
    s_add_u32 s79, s79, s36
    s_lshl_b32 s79, s79, 7
    s_add_u32 s79, s79, {QFLAG}
    v_lshrrev_b32 v12, 5, v1
    v_and_b32 v13, 31, v1
    v_lshlrev_b32 v14, 10, v12
    v_lshlrev_b32 v15, 4, v13
    v_add_u32 v14, v14, v15       ; v14 = Q voffset
    s_lshr_b32 s98, s39, 1        ; hq
    s_and_b32 s97, s39, 1         ; hf
    s_lshl_b32 s78, s35, 14
    s_lshl_b32 s99, s98, 12
    s_add_u32 s78, s78, s99
    s_lshl_b32 s99, s97, 9
    s_add_u32 s78, s78, s99
    s_add_u32 s78, s78, {QREC}
    v_lshlrev_b32 v15, 2, v13
    v_lshlrev_b32 v12, 1, v12
    v_add_u32 v15, v15, v12
    s_lshl_b32 s99, s98, 8
    s_lshl_b32 s97, s97, 7
    s_add_u32 s99, s99, s97
    v_add_u32 v15, s99, v15
    """)
    if hint1: hintpoll("QH", "s79")
    stamp()
    a(f"""
    buffer_load_dwordx4 v[16:19], v14, s[56:59], s78 offen sc1
    buffer_load_dwordx4 v[20:23], v14, s[56:59], s78 offen offset:2048 sc1
    """)
    if BAR1: a("s_barrier")
    for j in range(NV1, 8): ldV(j)
    nafter = 8 - NV1
    if WOPOS == "withV":
        ldWO(); nafter += 4
    a(f"""
    v_lshrrev_b32 v12, 2, v3
    v_lshlrev_b32 v12, 8, v12
    v_lshlrev_b32 v13, 6, v2
    v_add_u32 v12, v12, v13
    v_and_b32 v13, 3, v1
    v_lshlrev_b32 v13, 4, v13
    v_add_u32 v12, v12, v13
    s_mov_b32 s99, {SPIN}
    s_waitcnt vmcnt({nafter})
QCHK:
    v_cmpx_eq_u32 vcc, s66, v17
    v_cmpx_eq_u32 vcc, s66, v19
    v_cmpx_eq_u32 vcc, s66, v21
    v_cmpx_eq_u32 vcc, s66, v23
    s_cmp_eq_u64 exec, -1
    s_mov_b64 exec, -1
    s_cbranch_scc1 QOK
    s_sub_u32 s99, s99, 1
    s_cbranch_scc1 QOK
    buffer_load_dwordx4 v[16:19], v14, s[56:59], s78 offen sc1
    buffer_load_dwordx4 v[20:23], v14, s[56:59], s78 offen offset:2048 sc1
    s_waitcnt vmcnt(0)
    s_branch QCHK
QOK:
    v_add_f32 v16, v16, v20
    v_add_f32 v18, v18, v22
    v_permlane32_swap_b32 v16, v18
    v_add_f32 v16, v16, v18
    v_cvt_pk_bf16_f32 v16, v16, v16
    ds_write_b16 v15, v16 offset:{L_QB}
    """)
    stamp()
    if WOPOS == "afterQ":
        ldWO()
    a(f"""
    s_waitcnt lgkmcnt(0)
    s_barrier
    ds_read_b128 v[8:11], v12 offset:{L_QB}
    v_lshrrev_b32 v13, 2, v3
    v_lshlrev_b32 v13, 5, v13
    s_lshl_b32 s99, s39, 2
    v_add_u32 v14, s99, v13       ; h*32 + w*4
    s_waitcnt lgkmcnt(0)
    """)
    def Dj(j): return 16 + 4*j if j < 4 else 64 + 4*(j-4)
    for j in range(8):
        a(f"v_mfma_f32_16x16x32_bf16 v[{Dj(j)}:{Dj(j)+3}], v[{64+4*j}:{67+4*j}], v[8:11], 0")
    for half in range(2):
        js = range(4*half, 4*half+4)
        for j in js: a(f"v_mov_b32_dpp v{32+j}, v{Dj(j)} quad_perm:[0,0,0,0] row_mask:0xf bank_mask:0xf")
        for b in range(1, 4):
            for j in js: a(f"v_add_f32_dpp v{32+j}, v{Dj(j)+b}, v{32+j} quad_perm:[{b},{b},{b},{b}] row_mask:0xf bank_mask:0xf")
    a("s_mov_b32 s98, 0x3DB504F3")
    for u in range(4): a(f"v_cvt_pk_bf16_f32 v{40+u}, v{32+2*u}, v{33+2*u}")
    for u in range(4):
        a(f"v_lshlrev_b32 v{32+2*u}, 16, v{40+u}")
        a(f"v_and_b32 v{33+2*u}, 0xffff0000, v{40+u}")
    for j in range(8): a(f"v_mul_f32 v{32+j}, s98, v{32+j}")
    for u in range(4): a(f"v_cvt_pk_bf16_f32 v{40+u}, v{32+2*u}, v{33+2*u}")
    for u in range(4):
        a(f"v_lshlrev_b32 v{32+2*u}, 16, v{40+u}")
        a(f"v_and_b32 v{33+2*u}, 0xffff0000, v{40+u}")
    a(f"""
    v_max3_f32 v40, v32, v33, v34
    v_max3_f32 v41, v35, v36, v37
    v_max3_f32 v40, v40, v38, v39
    v_max_f32 v40, v40, v41
    v_mov_b32 v41, v40
    v_permlane32_swap_b32 v40, v41
    v_max_f32 v40, v40, v41
    v_mov_b32 v41, v40
    v_permlane16_swap_b32 v40, v41
    v_max_f32 v40, v40, v41
    s_mov_b64 exec, 0x1111
    ds_write_b32 v14, v40 offset:{L_MX}
    s_mov_b64 exec, -1
    s_waitcnt lgkmcnt(0)
    s_barrier
    ds_read_b128 v[40:43], v13 offset:{L_MX}
    ds_read_b128 v[44:47], v13 offset:{L_MX+16}
    s_mov_b32 s98, 0x3FB8AA3B     ; log2(e)
    s_waitcnt lgkmcnt(0)
    v_max3_f32 v40, v40, v41, v42
    v_max3_f32 v44, v44, v45, v46
    v_max3_f32 v40, v40, v43, v47
    v_max_f32 v10, v40, v44
    """)
    for j in range(8): a(f"v_sub_f32 v{32+j}, v{32+j}, v10")
    for j in range(8): a(f"v_mul_f32 v{32+j}, s98, v{32+j}")
    for j in range(8): a(f"v_exp_f32 v{32+j}, v{32+j}")
    a(f"""
    v_add_f32 v40, v32, v33
    v_add_f32 v41, v34, v35
    v_add_f32 v42, v36, v37
    v_add_f32 v43, v38, v39
    v_add_f32 v40, v40, v41
    v_add_f32 v42, v42, v43
    v_add_f32 v40, v40, v42
    v_cvt_pk_bf16_f32 v24, v32, v33
    v_cvt_pk_bf16_f32 v25, v34, v35
    v_cvt_pk_bf16_f32 v26, v36, v37
    v_cvt_pk_bf16_f32 v27, v38, v39
    v_mov_b32 v41, v40
    v_permlane32_swap_b32 v40, v41
    v_add_f32 v40, v40, v41
    v_mov_b32 v41, v40
    v_permlane16_swap_b32 v40, v41
    v_add_f32 v40, v40, v41
    s_mov_b64 exec, 0x1111
    ds_write_b32 v14, v40 offset:{L_LS}
    s_mov_b64 exec, -1
    s_mov_b32 s96, 0x11111111
    s_mov_b32 s97, 0x11111111
    """)
    for v in range(4):
        for u in range(4):
            a(f"v_cndmask_b32 v{32+4*v+u}, 0, v{24+u}, s[96:97]")
        if v < 3: a("s_lshl_b64 s[96:97], s[96:97], 1")
    stamp()
    if WOPOS == "afterP": ldWO()
    a(f"""
    v_lshlrev_b32 v11, 9, v2
    v_lshlrev_b32 v12, 5, v3
    v_add_u32 v11, v11, v12
    s_lshl_b32 s99, s39, 11
    v_add_u32 v11, s99, v11
    v_and_b32 v12, 31, v1
    v_lshlrev_b32 v13, 3, v12
    s_lshl_b32 s99, s39, 8
    v_add_u32 v13, s99, v13
    v_lshlrev_b32 v12, 4, v12
    s_lshl_b32 s98, s35, 4
    s_add_u32 s98, s98, s36
    s_lshl_b32 s78, s98, 12
    s_lshl_b32 s99, s39, 9
    s_add_u32 s78, s78, s99
    s_add_u32 s78, s78, {OREC}
    s_lshr_b32 s98, s39, 1        ; h
    s_lshl_b32 s99, s98, 2
    v_readlane_b32 s65, v10, s99
    s_lshl_b32 s99, s98, 5
    v_mov_b32 v14, s99
    """)
    wo_after = 4 if WOPOS in ("afterQ", "withV", "afterP") else 0
    def pv(half):
        V0 = 96 + 16*half; B0 = 64 + 16*half
        for e in range(8):
            pr = e >> 1; sel = "s76" if (e & 1) == 0 else "s77"
            a(f"v_perm_b32 v{B0+2*e}, v{V0+4+pr}, v{V0+pr}, {sel}")
            a(f"v_perm_b32 v{B0+2*e+1}, v{V0+12+pr}, v{V0+8+pr}, {sel}")
        for e in [0, 4, 1, 5, 2, 6, 3, 7]:
            acc = 16 if e < 4 else 20
            v = e & 3
            c = "0" if (half == 0 and v == 0) else f"v[{acc}:{acc+3}]"
            a(f"v_mfma_f32_16x16x16_bf16 v[{acc}:{acc+3}], v[{32+4*v+2*half}:{33+4*v+2*half}], v[{B0+2*e}:{B0+2*e+1}], {c}")
    a(f"s_waitcnt vmcnt({4+wo_after})")
    pv(0)
    a(f"s_waitcnt vmcnt({wo_after})")
    stamp()
    if WOPOS == "afterV": ldWO()
    pv(1)
    a(f"""
    ds_write_b128 v11, v[16:19] offset:{L_OP}
    ds_write_b128 v11, v[20:23] offset:{L_OP+16}
    v_mov_b32 v21, s66
    v_mov_b32 v23, s66
    s_waitcnt lgkmcnt(0)
    s_barrier
    """)
    for wp in range(8):
        a(f"ds_read_b64 v[{24+2*wp}:{25+2*wp}], v13 offset:{L_OP+wp*2048}")
    a(f"""
    ds_read_b128 v[40:43], v14 offset:{L_LS}
    ds_read_b128 v[44:47], v14 offset:{L_LS+16}
    s_waitcnt lgkmcnt(6)
    v_pk_add_f32 v[24:25], v[24:25], v[26:27]
    v_pk_add_f32 v[28:29], v[28:29], v[30:31]
    s_waitcnt lgkmcnt(2)
    v_pk_add_f32 v[32:33], v[32:33], v[34:35]
    v_pk_add_f32 v[36:37], v[36:37], v[38:39]
    v_pk_add_f32 v[24:25], v[24:25], v[28:29]
    v_pk_add_f32 v[32:33], v[32:33], v[36:37]
    v_add_f32 v20, v24, v32
    v_add_f32 v22, v25, v33
    s_mov_b32 exec_hi, 0
    buffer_store_dwordx4 v[20:23], v12, s[56:59], s78 offen sc1
    s_and_b32 s99, s39, 1
    s_cmp_lg_u32 s99, 0
    s_cbranch_scc1 NOSTAT
    s_waitcnt lgkmcnt(0)
    v_pk_add_f32 v[40:41], v[40:41], v[42:43]
    v_pk_add_f32 v[44:45], v[44:45], v[46:47]
    v_pk_add_f32 v[40:41], v[40:41], v[44:45]
    v_mov_b32 v24, s65
    v_mov_b32 v25, s66
    v_add_f32 v26, v40, v41
    v_mov_b32 v27, s66
    s_lshl_b32 s98, s35, 2
    s_lshr_b32 s99, s39, 1
    s_add_u32 s98, s98, s99
    s_lshl_b32 s97, s98, 8
    s_lshl_b32 s99, s36, 4
    s_add_u32 s97, s97, s99
    s_add_u32 s97, s97, {OSTAT}
    s_lshl_b32 s98, s98, 9
    s_lshl_b32 s99, s36, 2
    s_add_u32 s98, s98, s99
    s_add_u32 s98, s98, {OFLAG}
    v_lshlrev_b32 v28, 7, v1
    s_mov_b64 exec, 1
    buffer_store_dwordx4 v[24:27], v28, s[56:59], s97 offen sc1
    s_mov_b64 exec, 15
    buffer_store_dword v25, v28, s[56:59], s98 offen sc1
NOSTAT:
    s_mov_b64 exec, -1
    s_waitcnt lgkmcnt(0)
    """)
    stamp()
    if WOPOS == "afterO":
        ldWO()
    a(f"""
    s_lshr_b32 s98, s36, 2        ; hh
    s_lshl_b32 s99, s35, 2
    s_add_u32 s98, s98, s99       ; grp*4+hh
    s_lshl_b32 s79, s35, 4
    s_add_u32 s79, s79, s36
    s_lshl_b32 s79, s79, 7
    s_add_u32 s79, s79, {OFLAG}
    s_lshl_b32 s97, s98, 8
    s_add_u32 s97, s97, {OSTAT}
    s_lshl_b32 s78, s35, 16
    s_lshr_b32 s98, s36, 2
    s_lshl_b32 s98, s98, 10
    s_add_u32 s78, s78, s98
    s_lshl_b32 s98, s39, 7
    s_add_u32 s78, s78, s98
    s_add_u32 s78, s78, {OREC}
    v_lshlrev_b32 v12, 12, v3
    v_lshlrev_b32 v13, 5, v2
    v_add_u32 v12, v12, v13
    v_lshlrev_b32 v13, 4, v3
    v_lshlrev_b32 v11, 5, v3
    v_lshlrev_b32 v14, 4, v2
    v_add_u32 v11, v11, v14
    s_lshl_b32 s99, s39, 9
    v_add_u32 v11, s99, v11
    """)
    if hint2: hintpoll("OH", "s79")
    stamp()
    a(f"""
    buffer_load_dwordx4 v[64:67], v12, s[56:59], s78 offen sc1
    buffer_load_dwordx4 v[68:71], v12, s[56:59], s78 offen offset:16 sc1
    buffer_load_dwordx4 v[72:75], v13, s[56:59], s97 offen sc1
    s_waitcnt vmcnt(3)
    """)
    wmm(12)
    a(f"""
    s_mov_b32 s99, {SPIN}
    s_mov_b32 s98, 0x3FB8AA3B
    s_waitcnt vmcnt(0)
OCHK:
    v_cmpx_eq_u32 vcc, s66, v65
    v_cmpx_eq_u32 vcc, s66, v67
    v_cmpx_eq_u32 vcc, s66, v69
    v_cmpx_eq_u32 vcc, s66, v71
    v_cmpx_eq_u32 vcc, s66, v73
    v_cmpx_eq_u32 vcc, s66, v75
    s_cmp_eq_u64 exec, -1
    s_mov_b64 exec, -1
    s_cbranch_scc1 OOK
    s_sub_u32 s99, s99, 1
    s_cbranch_scc1 OOK
    buffer_load_dwordx4 v[64:67], v12, s[56:59], s78 offen sc1
    buffer_load_dwordx4 v[68:71], v12, s[56:59], s78 offen offset:16 sc1
    buffer_load_dwordx4 v[72:75], v13, s[56:59], s97 offen sc1
    s_waitcnt vmcnt(0)
    s_branch OCHK
OOK:
    s_nop 4
    v_max_f32_dpp v76, v72, v72 row_ror:8 row_mask:0xf bank_mask:0xf
    v_max_f32_dpp v76, v76, v76 row_ror:4 row_mask:0xf bank_mask:0xf
    v_max_f32_dpp v76, v76, v76 row_ror:2 row_mask:0xf bank_mask:0xf
    v_max_f32_dpp v76, v76, v76 row_ror:1 row_mask:0xf bank_mask:0xf
    v_sub_f32 v76, v72, v76
    v_mul_f32 v76, s98, v76
    v_exp_f32 v76, v76
    v_mul_f32 v80, v76, v74       ; f*l
    v_mul_f32 v81, v76, v64
    v_mul_f32 v82, v76, v66
    v_mul_f32 v83, v76, v68
    v_mul_f32 v84, v76, v70
    """)
    for r in (8, 4, 2, 1):
        for k in range(5):
            a(f"v_add_f32_dpp v{80+k}, v{80+k}, v{80+k} row_ror:{r} row_mask:0xf bank_mask:0xf")
    a(f"""
    v_rcp_f32 v80, v80
    v_mul_f32 v81, v81, v80
    v_mul_f32 v82, v82, v80
    v_mul_f32 v83, v83, v80
    v_mul_f32 v84, v84, v80
    v_cvt_pk_bf16_f32 v8, v81, v82
    v_cvt_pk_bf16_f32 v9, v83, v84
    s_mov_b32 s96, 0x00010001
    s_mov_b32 s97, 0x00010001
    """)
    for e in range(8):
        a(f"v_cndmask_b32 v{32+2*e}, 0, v8, s[96:97]")
        a(f"v_cndmask_b32 v{33+2*e}, 0, v9, s[96:97]")
        if e < 7: a("s_lshl_b64 s[96:97], s[96:97], 1")
    wmfma(12)
    a(f"""
    s_mov_b32 exec_hi, 0
    ds_write_b128 v11, v[12:15] offset:{L_QP}
    s_mov_b32 exec_hi, -1
    v_lshlrev_b32 v13, 3, v1      ; l*8
    v_lshlrev_b32 v12, 4, v1      ; l*16
    v_mov_b32 v21, s66
    v_mov_b32 v23, s66
    s_waitcnt lgkmcnt(0)
    s_barrier
    """)
    if ts == 2:
        a("s_memrealtime s[78:79]")
    if ts == 1:
        a(f"""
    s_memrealtime s[96:97]
    s_waitcnt lgkmcnt(0)
    s_add_u32 s84, s30, {TSOFF + (1<<20)}
    s_addc_u32 s85, s31, 0
    s_mov_b32 s86, 0x100000
    s_mov_b32 s87, 0x00020000
    s_lshl_b32 s88, s2, 3
    s_add_u32 s88, s88, s39
    s_lshl_b32 s88, s88, 7
    v_mov_b32 v4, 0
    s_mov_b64 exec, 1
        """)
        regs = [100] + [4+2*k for k in range(stampn[0])] + [96]
        for k, r in enumerate(regs):
            a(f"v_mov_b32 v2, s{r}")
            a(f"v_mov_b32 v3, s{r+1}")
            a(f"buffer_store_dwordx2 v[2:3], v4, s[84:87], s88 offen offset:{k*8}")
            a("s_nop 1")
        a("s_mov_b64 exec, -1")
    a(f"""
    s_cmp_eq_u32 s39, 0
    s_cbranch_scc1 FPUB
    s_cmp_lg_u32 s39, 1
    s_cbranch_scc1 END
    s_cmp_lt_u32 s2, 32
    s_cbranch_scc1 FINAL
    s_branch END
FPUB:
    """)
    for wp in range(8):
        a(f"ds_read_b64 v[{24+2*wp}:{25+2*wp}], v13 offset:{L_QP+wp*512}")
    a(f"""
    s_and_b32 s98, s36, 3
    s_lshl_b32 s98, s98, 6
    s_lshl_b32 s99, s35, 2
    s_add_u32 s98, s98, s99
    s_lshr_b32 s99, s36, 2
    s_add_u32 s98, s98, s99
    s_lshl_b32 s98, s98, 10
    s_add_u32 s98, s98, {FREC}
    s_waitcnt lgkmcnt(4)
    v_pk_add_f32 v[24:25], v[24:25], v[26:27]
    v_pk_add_f32 v[28:29], v[28:29], v[30:31]
    s_waitcnt lgkmcnt(0)
    v_pk_add_f32 v[32:33], v[32:33], v[34:35]
    v_pk_add_f32 v[36:37], v[36:37], v[38:39]
    v_pk_add_f32 v[24:25], v[24:25], v[28:29]
    v_pk_add_f32 v[32:33], v[32:33], v[36:37]
    v_add_f32 v20, v24, v32
    v_add_f32 v22, v25, v33
    buffer_store_dwordx4 v[20:23], v12, s[56:59], s98 offen sc1
    """)
    nst = stampn[0]
    def dump_ts(slot0, extra=None):
        a(f"""
    s_memrealtime s[96:97]
    s_waitcnt lgkmcnt(0)
    s_add_u32 s84, s30, {TSOFF}
    s_addc_u32 s85, s31, 0
    s_mov_b32 s86, 0x100000
    s_mov_b32 s87, 0x00020000
    s_lshl_b32 s88, s2, 9
    v_mov_b32 v1, 0
    s_mov_b64 exec, 1
        """)
        regs = [100] + [4+2*k for k in range(nst)] + [96]
        for k, r in enumerate(regs):
            a(f"v_mov_b32 v2, s{r}")
            a(f"v_mov_b32 v3, s{r+1}")
            a(f"buffer_store_dwordx2 v[2:3], v1, s[84:87], s88 offen offset:{(slot0+k)*8}")
            a("s_nop 1")
        return len(regs)
    if ts == 2:
        a("""
    s_memrealtime s[96:97]
    s_waitcnt lgkmcnt(0)
    s_mov_b32 s84, s28
    s_mov_b32 s85, s29
    s_mov_b32 s86, 256
    s_mov_b32 s87, 0x00020000
    v_mov_b32 v1, 0
    s_mov_b64 exec, 1
    s_not_b32 s99, s100
    v_mov_b32 v2, s99
    buffer_atomic_umax v2, v1, s[84:87], 0 offen offset:0
        """)
        regs = [100] + [4+2*k for k in range(nst)] + [78, 96]
        for k, r in enumerate(regs):
            a(f"v_mov_b32 v{3+k}, s{r}")
            a(f"buffer_atomic_umax v{3+k}, v1, s[84:87], 0 offen offset:{(1+k)*4}")
    if ts == 1:
        n = dump_ts(0)
        a(f"""
    v_mov_b32 v2, {n+1}
    v_mov_b32 v3, 0
    buffer_store_dwordx2 v[2:3], v1, s[84:87], s88 offen offset:{63*8}
    s_cmp_lt_u32 s2, 32
    s_cbranch_scc1 END
    v_mov_b32 v2, s96
    v_mov_b32 v3, s97
    buffer_store_dwordx2 v[2:3], v1, s[84:87], s88 offen offset:{n*8}
        """)
    a(f"""
    s_branch END
FINAL:
    s_mov_b32 s44, s24            ; gate_w
    s_mov_b32 s45, s25
    s_mov_b32 s46, 1024
    s_mov_b32 s47, 0x00020000
    v_lshlrev_b32 v12, 4, v1      ; l*16
    buffer_load_dwordx4 v[64:67], v12, s[60:63], 0 offen
    buffer_load_dwordx4 v[68:71], v12, s[44:47], 0 offen
    v_lshrrev_b32 v13, 3, v1
    v_lshlrev_b32 v13, 10, v13
    v_and_b32 v14, 7, v1
    v_lshlrev_b32 v14, 4, v14
    v_add_u32 v13, v13, v14
    s_lshr_b32 s98, s2, 3
    s_lshl_b32 s98, s98, 16
    s_and_b32 s99, s2, 7
    s_lshl_b32 s99, s99, 7
    s_add_u32 s98, s98, s99
    s_add_u32 s80, s98, {FREC}
    """)
    for j in range(1, 8): a(f"s_add_u32 s{80+j}, s80, {j*8192}")
    def recloads():
        for j in range(8):
            a(f"buffer_load_dwordx4 v[{96+4*j}:{99+4*j}], v13, s[56:59], s{80+j} offen sc1")
    recloads()
    a("s_waitcnt vmcnt(8)")
    for k in range(4):
        a(f"v_lshlrev_b32 v{72+2*k}, 16, v{64+k}")
        a(f"v_and_b32 v{73+2*k}, 0xffff0000, v{64+k}")
        a(f"v_lshlrev_b32 v{80+2*k}, 16, v{68+k}")
        a(f"v_and_b32 v{81+2*k}, 0xffff0000, v{68+k}")
    for k in range(8): a(f"v_mul_f32 v{72+k}, v{72+k}, v{80+k}")
    for k in range(4): a(f"v_cvt_pk_bf16_f32 v{80+k}, v{72+2*k}, v{73+2*k}")
    for k in range(4):
        a(f"v_lshlrev_b32 v{72+2*k}, 16, v{80+k}")
        a(f"v_and_b32 v{73+2*k}, 0xffff0000, v{80+k}")
    a(f"""
    v_add_f32 v72, v72, v73
    v_add_f32 v74, v74, v75
    v_add_f32 v76, v76, v77
    v_add_f32 v78, v78, v79
    v_add_f32 v72, v72, v74
    v_add_f32 v76, v76, v78
    v_add_f32 v72, v72, v76
    v_add_f32_dpp v72, v72, v72 row_ror:8 row_mask:0xf bank_mask:0xf
    v_add_f32_dpp v72, v72, v72 row_ror:4 row_mask:0xf bank_mask:0xf
    v_add_f32_dpp v72, v72, v72 row_ror:2 row_mask:0xf bank_mask:0xf
    v_add_f32_dpp v72, v72, v72 row_ror:1 row_mask:0xf bank_mask:0xf
    v_mov_b32 v73, v72
    v_permlane16_swap_b32 v72, v73
    v_add_f32 v72, v72, v73
    v_mov_b32 v73, v72
    v_permlane32_swap_b32 v72, v73
    v_add_f32 v72, v72, v73
    v_cvt_pk_bf16_f32 v72, v72, v72
    v_lshlrev_b32 v72, 16, v72          ; bf16(sum)
    v_mul_f32 v72, 0xBFB8AA3B, v72      ; -log2e * s
    v_exp_f32 v72, v72
    v_add_f32 v72, 1.0, v72
    v_rcp_f32 v72, v72
    v_cvt_pk_bf16_f32 v72, v72, v72
    v_lshlrev_b32 v72, 16, v72          ; g (bf16)
    v_sub_f32 v73, 1.0, v72
    v_cvt_pk_bf16_f32 v73, v73, v73
    v_lshlrev_b32 v73, 16, v73          ; 1-g (bf16)
    s_mov_b32 s96, 0
    s_mov_b32 s97, -1
    v_cndmask_b32 v72, v72, v73, s[96:97]
    v_and_b32 v14, 7, v1
    v_lshlrev_b32 v14, 2, v14
    v_lshrrev_b32 v15, 4, v1
    v_and_b32 v15, 1, v15
    v_lshlrev_b32 v15, 1, v15
    v_add_u32 v14, v14, v15
    s_lshl_b32 s98, s2, 5
    s_mov_b32 s44, s26
    s_mov_b32 s45, s27
    s_mov_b32 s99, {SPIN}
    s_waitcnt vmcnt(0)
FCHK:
    """)
    for j in range(8):
        a(f"v_cmpx_eq_u32 vcc, s66, v{97+4*j}")
        a(f"v_cmpx_eq_u32 vcc, s66, v{99+4*j}")
    a(f"""
    s_cmp_eq_u64 exec, -1
    s_mov_b64 exec, -1
    s_cbranch_scc1 FOK
    s_sub_u32 s99, s99, 1
    s_cbranch_scc1 FOK
    """)
    recloads()
    a(f"""
    s_waitcnt vmcnt(0)
    s_branch FCHK
FOK:
    v_add_f32 v96, v96, v100
    v_add_f32 v98, v98, v102
    v_add_f32 v104, v104, v108
    v_add_f32 v106, v106, v110
    v_add_f32 v112, v112, v116
    v_add_f32 v114, v114, v118
    v_add_f32 v120, v120, v124
    v_add_f32 v122, v122, v126
    v_add_f32 v96, v96, v104      ; A0
    v_add_f32 v112, v112, v120    ; B0
    v_add_f32 v98, v98, v106      ; A1
    v_add_f32 v114, v114, v122    ; B1
    v_permlane32_swap_b32 v96, v112
    v_permlane32_swap_b32 v98, v114
    v_add_f32 v96, v96, v112
    v_add_f32 v98, v98, v114
    v_permlane16_swap_b32 v96, v98
    v_add_f32 v96, v96, v98
    v_add_f32_dpp v96, v96, v96 row_ror:8 row_mask:0xf bank_mask:0xf
    v_cvt_pk_bf16_f32 v96, v96, v96
    v_lshlrev_b32 v96, 16, v96
    v_mul_f32 v96, v96, v72
    v_cvt_pk_bf16_f32 v96, v96, v96
    v_lshlrev_b32 v96, 16, v96
    v_mov_b32 v97, v96
    v_permlane32_swap_b32 v96, v97
    v_add_f32 v96, v96, v97
    v_cvt_pk_bf16_f32 v96, v96, v96
    s_mov_b32 exec_lo, 0x00ff00ff
    s_mov_b32 exec_hi, 0
    buffer_store_short v96, v14, s[44:47], s98 offen
    s_cmp_lg_u32 s2, 0
    s_cbranch_scc1 NOEPOCH
    s_add_u32 s64, s64, 1
    v_mov_b32 v2, s64
    v_mov_b32 v3, 0
    s_mov_b64 exec, 1
    buffer_store_dword v2, v3, s[56:59], 0 offen
NOEPOCH:
    """)
    if ts == 2:
        a(f"""
    s_waitcnt vmcnt(0)
    s_memrealtime s[96:97]
    s_waitcnt lgkmcnt(0)
    s_mov_b32 s84, s28
    s_mov_b32 s85, s29
    s_mov_b32 s86, 256
    s_mov_b32 s87, 0x00020000
    v_mov_b32 v1, 0
    s_mov_b64 exec, 1
    v_mov_b32 v2, s96
    buffer_atomic_umax v2, v1, s[84:87], 0 offen offset:{15*4}
        """)
    if ts == 1:
        a(f"""
    s_waitcnt vmcnt(0)
    s_memrealtime s[96:97]
    s_waitcnt lgkmcnt(0)
    s_add_u32 s84, s30, {TSOFF}
    s_addc_u32 s85, s31, 0
    s_mov_b32 s86, 0x100000
    s_mov_b32 s87, 0x00020000
    s_lshl_b32 s88, s2, 9
    v_mov_b32 v1, 0
    s_mov_b64 exec, 1
    v_mov_b32 v2, s96
    v_mov_b32 v3, s97
    buffer_store_dwordx2 v[2:3], v1, s[84:87], s88 offen offset:{(nst+2)*8}
        """)
    a("END:")
    open(name, "w").write(a.text(256, 512, LDS_BYTES, 128))
    mk.build(name)
    return a

if __name__ == "__main__":
    kw = {}
    name = sys.argv[1]
    for x in sys.argv[2:]:
        k, v = x.split("=")
        kw[k] = int(v) if v.lstrip("-").isdigit() else v
    a = gen(name, **kw)
    print("nops inserted:", a.nops, "lines:", len(a.lines))
```

```python
import sys
from asmlib import *
import mk

QFLAG = 0x8000
OFLAG = 0x50000
OSTAT = 0x4000
QREC  = 0x10000
FREC  = 0x80000
OREC  = 0x100000
TSOFF = 64 << 20
L_QP = 0
L_QB = 4096
L_MX = 5120
L_LS = 5248
L_OP = 8192
LDS_BYTES = 24576
SPIN = 100000

def gen(name, ts=False, NK1=8, NV1=4, WOPOS="afterQ", hint1=True, hint2=True, BAR0=1, BAR1=1, BARP=1, PF=0, TLBW=0, EG=0, FPIPE=0):
    a = Asm()
    stampn = [0]
    def stamp():
        if not ts: return
        k = stampn[0]; stampn[0] += 1
        assert k < 10
        a(f"s_memrealtime s[{4+2*k}:{5+2*k}]")
    a(f"""
    s_cmp_ge_u32 s2, 256
    s_cbranch_scc1 END
    """)
    if ts: a("s_memrealtime s[100:101]")
    PFCODE = ""
    if PF:
        PFCODE = """s_getpc_b64 s[90:91]
PFBASE:
    v_lshlrev_b32 v120, 4, v0
    v_min_u32 v120, END-PFBASE, v120
    global_load_dword v121, v120, s[90:91]"""
    a(f"""
    s_load_dwordx16 s[4:19], s[0:1], 0
    s_load_dwordx8 s[20:27], s[0:1], 64
    s_load_dwordx4 s[28:31], s[0:1], 96
    {PFCODE}
    s_and_b32 s32, s2, 7          ; xcd
    s_lshr_b32 s33, s2, 3         ; slot
    s_lshr_b32 s34, s33, 4
    s_lshl_b32 s35, s32, 1
    s_add_u32 s35, s35, s34       ; grp
    s_and_b32 s36, s33, 15        ; i
    s_lshr_b32 s37, s35, 3        ; branch
    s_and_b32 s38, s35, 7         ; kvh
    v_lshrrev_b32 v10, 6, v0      ; wave
    v_and_b32 v1, 63, v0          ; lane
    v_readfirstlane_b32 s39, v10  ; w
    v_lshrrev_b32 v2, 4, v1       ; g
    v_and_b32 v3, 15, v1          ; c
    v_lshlrev_b32 v11, 4, v3      ; c*16
    v_lshlrev_b32 v4, 15, v2
    v_add_u32 v4, v4, v11
    v_lshlrev_b32 v7, 12, v2
    v_add_u32 v7, v7, v11
    v_lshrrev_b32 v5, 2, v3
    v_lshlrev_b32 v5, 8, v5       ; row*256
    v_lshlrev_b32 v10, 6, v2      ; g*64
    v_add_u32 v5, v5, v10
    v_and_b32 v10, 3, v1
    v_lshlrev_b32 v10, 4, v10
    v_add_u32 v5, v5, v10         ; K voffset
    v_lshlrev_b32 v6, 4, v1       ; V voffset = l*16
    v_lshlrev_b32 v10, 3, v2      ; x voffset = g*8
    s_and_b32 s96, s36, 3
    s_lshr_b32 s97, s36, 2        ; hh
    s_lshl_b32 s98, s38, 2
    s_add_u32 s98, s98, s97
    s_lshl_b32 s68, s96, 20
    s_lshl_b32 s99, s39, 17
    s_add_u32 s68, s68, s99
    s_lshl_b32 s99, s98, 8
    s_add_u32 s68, s68, s99
    s_add_u32 s69, s68, 8192
    s_add_u32 s70, s68, 16384
    s_add_u32 s71, s68, 24576
    s_lshl_b32 s75, s96, 8
    s_lshl_b32 s99, s39, 5
    s_add_u32 s75, s75, s99
    s_lshl_b32 s72, s38, 23
    s_add_u32 s72, s72, {28672*256}
    s_lshl_b32 s99, s36, 16
    s_add_u32 s72, s72, s99
    s_lshl_b32 s99, s39, 13
    s_add_u32 s72, s72, s99       ; K/V soffset
    s_add_u32 s73, s72, 4096
    s_lshl_b32 s74, s98, 17
    s_lshl_b32 s99, s39, 14
    s_add_u32 s74, s74, s99
    s_lshl_b32 s99, s96, 8
    s_add_u32 s74, s74, s99
    s_cmp_eq_u32 s37, 0
    s_mov_b32 s50, 0x400000
    s_mov_b32 s51, 0x00020000
    s_mov_b32 s62, 1024
    s_mov_b32 s63, 0x00020000
    s_mov_b32 s42, 0x4000000
    s_mov_b32 s43, 0x00020000
    s_waitcnt lgkmcnt(0)
    s_cselect_b32 s48, s10, s20   ; wq
    s_cselect_b32 s49, s11, s21
    s_mov_b32 s60, s4             ; x
    s_mov_b32 s61, s5
    buffer_load_dwordx2 v[8:9], v10, s[60:63], s75 offen
    """)
    for j in range(4):
        a(f"buffer_load_dwordx4 v[{48+4*j}:{51+4*j}], v4, s[48:51], s{68+j} offen nt")
    a(f"""
    s_cselect_b32 s40, s6, s16    ; K
    s_cselect_b32 s41, s7, s17
    """)
    if BAR0: a("s_barrier")
    def ldK(j):
        a(f"buffer_load_dwordx4 v[{64+4*j}:{67+4*j}], v5, s[40:43], s{72 + (j>>2)} offen offset:{(j&3)*1024} nt")
    def ldV(j):
        a(f"buffer_load_dwordx4 v[{96+4*j}:{99+4*j}], v6, s[44:47], s{72 + (j>>2)} offen offset:{(j&3)*1024} nt")
    def ldWO():
        for j in range(4):
            a(f"buffer_load_dwordx4 v[{48+4*j}:{51+4*j}], v7, s[52:55], s74 offen offset:{j*1024} nt")
    for j in range(NK1): ldK(j)
    TLBCODE = ""
    if TLBW:
        TLBCODE = """s_load_dword s92, s[44:45], s72
    s_load_dword s93, s[52:53], s74"""
    a(f"""
    s_load_dword s64, s[30:31], 0     ; epoch
    s_cselect_b32 s44, s8, s18    ; V
    s_cselect_b32 s45, s9, s19
    s_mov_b32 s46, 0x4000000
    s_mov_b32 s47, 0x00020000
    s_cselect_b32 s52, s12, s22   ; wo
    s_cselect_b32 s53, s13, s23
    s_mov_b32 s54, 0x400000
    s_mov_b32 s55, 0x00020000
    s_mov_b32 s56, s30            ; ws
    s_mov_b32 s57, s31
    s_mov_b32 s58, 0x400000
    s_mov_b32 s59, 0x00020000
    {TLBCODE}
    s_mov_b32 s76, 0x05040100
    s_mov_b32 s77, 0x07060302
    v_lshlrev_b32 v11, 5, v3
    v_lshlrev_b32 v12, 4, v2
    v_add_u32 v11, v11, v12
    s_lshl_b32 s99, s39, 9
    v_add_u32 v11, s99, v11       ; v11 = w*512 + c*32 + g*16
    """)
    stamp()
    a(f"s_waitcnt vmcnt({4+NK1})")
    a("s_mov_b32 s96, 0x00010001\ns_mov_b32 s97, 0x00010001")
    for e in range(8):
        a(f"v_cndmask_b32 v{32+2*e}, 0, v8, s[96:97]")
        a(f"v_cndmask_b32 v{33+2*e}, 0, v9, s[96:97]")
        if e < 7: a("s_lshl_b64 s[96:97], s[96:97], 1")
    def wmm(acc):
        for e in range(8):
            pr = e >> 1; sel = "s76" if (e & 1) == 0 else "s77"
            a(f"v_perm_b32 v{16+2*e}, v{52+pr}, v{48+pr}, {sel}")
            a(f"v_perm_b32 v{17+2*e}, v{60+pr}, v{56+pr}, {sel}")
    def wmfma(acc):
        for e in range(8):
            c = "0" if e == 0 else f"v[{acc}:{acc+3}]"
            a(f"v_mfma_f32_16x16x16_bf16 v[{acc}:{acc+3}], v[{32+2*e}:{33+2*e}], v[{16+2*e}:{17+2*e}], {c}")
    a(f"s_waitcnt vmcnt({NK1})")
    stamp()
    wmm(12)
    wmfma(12)
    a(f"""
    s_waitcnt lgkmcnt(0)
    s_mul_i32 s66, s64, 0x9E3779B1
    s_add_u32 s66, s66, 0x3C6EF372   ; T
    s_mov_b32 s67, s66
    s_mov_b32 exec_hi, 0
    ds_write_b128 v11, v[12:15] offset:{L_QP}
    s_mov_b32 exec_hi, -1
    v_and_b32 v12, 7, v1
    v_lshlrev_b32 v13, 3, v12
    s_lshl_b32 s99, s39, 6
    v_add_u32 v13, s99, v13       ; w*64 + p*8
    v_lshlrev_b32 v12, 4, v12
    s_lshl_b32 s99, s39, 7
    v_add_u32 v12, s99, v12
    s_lshl_b32 s98, s35, 4
    s_add_u32 s98, s98, s36
    s_lshl_b32 s78, s98, 10
    s_add_u32 s78, s78, {QREC}
    v_mov_b32 v21, s66
    v_mov_b32 v23, s66
    s_waitcnt lgkmcnt(0)
    s_barrier
    """)
    for wp in range(8):
        a(f"ds_read_b64 v[{24+2*(wp&3)}:{25+2*(wp&3)}], v13 offset:{L_QP+wp*512}" if wp < 4 else
          f"ds_read_b64 v[{32+2*(wp&3)}:{33+2*(wp&3)}], v13 offset:{L_QP+wp*512}")
    a(f"""
    s_waitcnt lgkmcnt(4)
    v_pk_add_f32 v[24:25], v[24:25], v[26:27]
    v_pk_add_f32 v[28:29], v[28:29], v[30:31]
    s_waitcnt lgkmcnt(0)
    v_pk_add_f32 v[32:33], v[32:33], v[34:35]
    v_pk_add_f32 v[36:37], v[36:37], v[38:39]
    v_pk_add_f32 v[24:25], v[24:25], v[28:29]
    v_pk_add_f32 v[32:33], v[32:33], v[36:37]
    v_add_f32 v20, v24, v32
    v_add_f32 v22, v25, v33
    s_mov_b64 exec, 0xff
    buffer_store_dwordx4 v[20:23], v12, s[56:59], s78 offen sc1
    s_cmp_lg_u32 s39, 0
    s_cbranch_scc1 NOQFLAG
    s_lshl_b32 s99, s35, 11
    s_add_u32 s99, s99, {QFLAG}
    s_mov_b64 exec, 0xffff
    v_lshlrev_b32 v12, 7, v1
    s_lshl_b32 s98, s36, 2
    s_add_u32 s99, s99, s98
    buffer_store_dword v21, v12, s[56:59], s99 offen sc1
NOQFLAG:
    s_mov_b64 exec, -1
    """)
    stamp()
    if BARP: a("s_barrier")
    nafter = 0
    for j in range(NK1, 8): ldK(j)
    for j in range(NV1): ldV(j)
    def hintpoll(lbl, offreg):
        a(f"""
    s_cmp_lg_u32 s39, 0
    s_cbranch_scc1 {lbl}_B
    s_mov_b32 s99, {SPIN}
{lbl}:
    s_load_dwordx16 s[80:95], s[30:31], {offreg} glc
    s_sub_u32 s99, s99, 1
    s_cbranch_scc1 {lbl}_X
    s_waitcnt lgkmcnt(0)
        """)
        for k in range(8):
            a(f"s_xor_b64 s[{80+2*k}:{81+2*k}], s[{80+2*k}:{81+2*k}], s[66:67]")
        for k in range(1, 8):
            a(f"s_or_b64 s[80:81], s[80:81], s[{80+2*k}:{81+2*k}]")
        a(f"""
    s_cbranch_scc1 {lbl}
{lbl}_X:
    s_waitcnt lgkmcnt(0)
{lbl}_B:
    s_barrier
        """)
    a(f"""
    s_lshl_b32 s79, s35, 4
    s_add_u32 s79, s79, s36
    s_lshl_b32 s79, s79, 7
    s_add_u32 s79, s79, {QFLAG}
    v_lshrrev_b32 v12, 5, v1
    v_and_b32 v13, 31, v1
    v_lshlrev_b32 v14, 10, v12
    v_lshlrev_b32 v15, 4, v13
    v_add_u32 v14, v14, v15       ; v14 = Q voffset
    s_lshr_b32 s98, s39, 1        ; hq
    s_and_b32 s97, s39, 1         ; hf
    s_lshl_b32 s78, s35, 14
    s_lshl_b32 s99, s98, 12
    s_add_u32 s78, s78, s99
    s_lshl_b32 s99, s97, 9
    s_add_u32 s78, s78, s99
    s_add_u32 s78, s78, {QREC}
    v_lshlrev_b32 v15, 2, v13
    v_lshlrev_b32 v12, 1, v12
    v_add_u32 v15, v15, v12
    s_lshl_b32 s99, s98, 8
    s_lshl_b32 s97, s97, 7
    s_add_u32 s99, s99, s97
    v_add_u32 v15, s99, v15
    """)
    if hint1: hintpoll("QH", "s79")
    stamp()
    a(f"""
    buffer_load_dwordx4 v[16:19], v14, s[56:59], s78 offen sc1
    buffer_load_dwordx4 v[20:23], v14, s[56:59], s78 offen offset:2048 sc1
    """)
    if BAR1: a("s_barrier")
    for j in range(NV1, 8): ldV(j)
    nafter = 8 - NV1
    if WOPOS == "withV":
        ldWO(); nafter += 4
    a(f"""
    v_lshrrev_b32 v12, 2, v3
    v_lshlrev_b32 v12, 8, v12
    v_lshlrev_b32 v13, 6, v2
    v_add_u32 v12, v12, v13
    v_and_b32 v13, 3, v1
    v_lshlrev_b32 v13, 4, v13
    v_add_u32 v12, v12, v13
    s_mov_b32 s99, {SPIN}
    s_waitcnt vmcnt({nafter})
QCHK:
    v_cmpx_eq_u32 vcc, s66, v17
    v_cmpx_eq_u32 vcc, s66, v19
    v_cmpx_eq_u32 vcc, s66, v21
    v_cmpx_eq_u32 vcc, s66, v23
    s_cmp_eq_u64 exec, -1
    s_mov_b64 exec, -1
    s_cbranch_scc1 QOK
    s_sub_u32 s99, s99, 1
    s_cbranch_scc1 QOK
    buffer_load_dwordx4 v[16:19], v14, s[56:59], s78 offen sc1
    buffer_load_dwordx4 v[20:23], v14, s[56:59], s78 offen offset:2048 sc1
    s_waitcnt vmcnt(0)
    s_branch QCHK
QOK:
    v_add_f32 v16, v16, v20
    v_add_f32 v18, v18, v22
    v_permlane32_swap_b32 v16, v18
    v_add_f32 v16, v16, v18
    v_cvt_pk_bf16_f32 v16, v16, v16
    ds_write_b16 v15, v16 offset:{L_QB}
    """)
    stamp()
    if WOPOS == "afterQ":
        ldWO()
    a(f"""
    s_waitcnt lgkmcnt(0)
    s_barrier
    ds_read_b128 v[8:11], v12 offset:{L_QB}
    v_lshrrev_b32 v13, 2, v3
    v_lshlrev_b32 v13, 5, v13
    s_lshl_b32 s99, s39, 2
    v_add_u32 v14, s99, v13       ; h*32 + w*4
    s_waitcnt lgkmcnt(0)
    """)
    def Dj(j): return 16 + 4*j if j < 4 else 64 + 4*(j-4)
    for j in range(8):
        a(f"v_mfma_f32_16x16x32_bf16 v[{Dj(j)}:{Dj(j)+3}], v[{64+4*j}:{67+4*j}], v[8:11], 0")
    for half in range(2):
        js = range(4*half, 4*half+4)
        for j in js: a(f"v_mov_b32_dpp v{32+j}, v{Dj(j)} quad_perm:[0,0,0,0] row_mask:0xf bank_mask:0xf")
        for b in range(1, 4):
            for j in js: a(f"v_add_f32_dpp v{32+j}, v{Dj(j)+b}, v{32+j} quad_perm:[{b},{b},{b},{b}] row_mask:0xf bank_mask:0xf")
    a("s_mov_b32 s98, 0x3DB504F3")
    for u in range(4): a(f"v_cvt_pk_bf16_f32 v{40+u}, v{32+2*u}, v{33+2*u}")
    for u in range(4):
        a(f"v_lshlrev_b32 v{32+2*u}, 16, v{40+u}")
        a(f"v_and_b32 v{33+2*u}, 0xffff0000, v{40+u}")
    for j in range(8): a(f"v_mul_f32 v{32+j}, s98, v{32+j}")
    for u in range(4): a(f"v_cvt_pk_bf16_f32 v{40+u}, v{32+2*u}, v{33+2*u}")
    for u in range(4):
        a(f"v_lshlrev_b32 v{32+2*u}, 16, v{40+u}")
        a(f"v_and_b32 v{33+2*u}, 0xffff0000, v{40+u}")
    a(f"""
    v_max3_f32 v40, v32, v33, v34
    v_max3_f32 v41, v35, v36, v37
    v_max3_f32 v40, v40, v38, v39
    v_max_f32 v40, v40, v41
    v_mov_b32 v41, v40
    v_permlane32_swap_b32 v40, v41
    v_max_f32 v40, v40, v41
    v_mov_b32 v41, v40
    v_permlane16_swap_b32 v40, v41
    v_max_f32 v40, v40, v41
    s_mov_b64 exec, 0x1111
    ds_write_b32 v14, v40 offset:{L_MX}
    s_mov_b64 exec, -1
    s_waitcnt lgkmcnt(0)
    s_barrier
    ds_read_b128 v[40:43], v13 offset:{L_MX}
    ds_read_b128 v[44:47], v13 offset:{L_MX+16}
    s_mov_b32 s98, 0x3FB8AA3B     ; log2(e)
    s_waitcnt lgkmcnt(0)
    v_max3_f32 v40, v40, v41, v42
    v_max3_f32 v44, v44, v45, v46
    v_max3_f32 v40, v40, v43, v47
    v_max_f32 v10, v40, v44
    """)
    for j in range(8): a(f"v_sub_f32 v{32+j}, v{32+j}, v10")
    for j in range(8): a(f"v_mul_f32 v{32+j}, s98, v{32+j}")
    for j in range(8): a(f"v_exp_f32 v{32+j}, v{32+j}")
    a(f"""
    v_add_f32 v40, v32, v33
    v_add_f32 v41, v34, v35
    v_add_f32 v42, v36, v37
    v_add_f32 v43, v38, v39
    v_add_f32 v40, v40, v41
    v_add_f32 v42, v42, v43
    v_add_f32 v40, v40, v42
    v_cvt_pk_bf16_f32 v24, v32, v33
    v_cvt_pk_bf16_f32 v25, v34, v35
    v_cvt_pk_bf16_f32 v26, v36, v37
    v_cvt_pk_bf16_f32 v27, v38, v39
    v_mov_b32 v41, v40
    v_permlane32_swap_b32 v40, v41
    v_add_f32 v40, v40, v41
    v_mov_b32 v41, v40
    v_permlane16_swap_b32 v40, v41
    v_add_f32 v40, v40, v41
    s_mov_b64 exec, 0x1111
    ds_write_b32 v14, v40 offset:{L_LS}
    s_mov_b64 exec, -1
    s_mov_b32 s96, 0x11111111
    s_mov_b32 s97, 0x11111111
    """)
    for v in range(4):
        for u in range(4):
            a(f"v_cndmask_b32 v{32+4*v+u}, 0, v{24+u}, s[96:97]")
        if v < 3: a("s_lshl_b64 s[96:97], s[96:97], 1")
    stamp()
    if WOPOS == "afterP": ldWO()
    a(f"""
    v_lshlrev_b32 v11, 9, v2
    v_lshlrev_b32 v12, 5, v3
    v_add_u32 v11, v11, v12
    s_lshl_b32 s99, s39, 11
    v_add_u32 v11, s99, v11
    v_and_b32 v12, 31, v1
    v_lshlrev_b32 v13, 3, v12
    s_lshl_b32 s99, s39, 8
    v_add_u32 v13, s99, v13
    v_lshlrev_b32 v12, 4, v12
    s_lshl_b32 s98, s35, 4
    s_add_u32 s98, s98, s36
    s_lshl_b32 s78, s98, 12
    s_lshl_b32 s99, s39, 9
    s_add_u32 s78, s78, s99
    s_add_u32 s78, s78, {OREC}
    s_lshr_b32 s98, s39, 1        ; h
    s_lshl_b32 s99, s98, 2
    v_readlane_b32 s65, v10, s99
    s_lshl_b32 s99, s98, 5
    v_mov_b32 v14, s99
    """)
    wo_after = 4 if WOPOS in ("afterQ", "withV", "afterP") else 0
    def pv(half):
        V0 = 96 + 16*half; B0 = 64 + 16*half
        for e in range(8):
            pr = e >> 1; sel = "s76" if (e & 1) == 0 else "s77"
            a(f"v_perm_b32 v{B0+2*e}, v{V0+4+pr}, v{V0+pr}, {sel}")
            a(f"v_perm_b32 v{B0+2*e+1}, v{V0+12+pr}, v{V0+8+pr}, {sel}")
        for e in [0, 4, 1, 5, 2, 6, 3, 7]:
            acc = 16 if e < 4 else 20
            v = e & 3
            c = "0" if (half == 0 and v == 0) else f"v[{acc}:{acc+3}]"
            a(f"v_mfma_f32_16x16x16_bf16 v[{acc}:{acc+3}], v[{32+4*v+2*half}:{33+4*v+2*half}], v[{B0+2*e}:{B0+2*e+1}], {c}")
    a(f"s_waitcnt vmcnt({4+wo_after})")
    pv(0)
    a(f"s_waitcnt vmcnt({wo_after})")
    stamp()
    if WOPOS == "afterV": ldWO()
    pv(1)
    a(f"""
    ds_write_b128 v11, v[16:19] offset:{L_OP}
    ds_write_b128 v11, v[20:23] offset:{L_OP+16}
    v_mov_b32 v21, s66
    v_mov_b32 v23, s66
    s_waitcnt lgkmcnt(0)
    s_barrier
    """)
    for wp in range(8):
        a(f"ds_read_b64 v[{24+2*wp}:{25+2*wp}], v13 offset:{L_OP+wp*2048}")
    a(f"""
    ds_read_b128 v[40:43], v14 offset:{L_LS}
    ds_read_b128 v[44:47], v14 offset:{L_LS+16}
    s_waitcnt lgkmcnt(6)
    v_pk_add_f32 v[24:25], v[24:25], v[26:27]
    v_pk_add_f32 v[28:29], v[28:29], v[30:31]
    s_waitcnt lgkmcnt(2)
    v_pk_add_f32 v[32:33], v[32:33], v[34:35]
    v_pk_add_f32 v[36:37], v[36:37], v[38:39]
    v_pk_add_f32 v[24:25], v[24:25], v[28:29]
    v_pk_add_f32 v[32:33], v[32:33], v[36:37]
    v_add_f32 v20, v24, v32
    v_add_f32 v22, v25, v33
    s_mov_b32 exec_hi, 0
    buffer_store_dwordx4 v[20:23], v12, s[56:59], s78 offen sc1
    s_and_b32 s99, s39, 1
    s_cmp_lg_u32 s99, 0
    s_cbranch_scc1 NOSTAT
    s_waitcnt lgkmcnt(0)
    v_pk_add_f32 v[40:41], v[40:41], v[42:43]
    v_pk_add_f32 v[44:45], v[44:45], v[46:47]
    v_pk_add_f32 v[40:41], v[40:41], v[44:45]
    v_mov_b32 v24, s65
    v_mov_b32 v25, s66
    v_add_f32 v26, v40, v41
    v_mov_b32 v27, s66
    s_lshl_b32 s98, s35, 2
    s_lshr_b32 s99, s39, 1
    s_add_u32 s98, s98, s99
    s_lshl_b32 s97, s98, 8
    s_lshl_b32 s99, s36, 4
    s_add_u32 s97, s97, s99
    s_add_u32 s97, s97, {OSTAT}
    s_lshl_b32 s98, s98, 9
    s_lshl_b32 s99, s36, 2
    s_add_u32 s98, s98, s99
    s_add_u32 s98, s98, {OFLAG}
    v_lshlrev_b32 v28, 7, v1
    s_mov_b64 exec, 1
    buffer_store_dwordx4 v[24:27], v28, s[56:59], s97 offen sc1
    s_mov_b64 exec, 15
    buffer_store_dword v25, v28, s[56:59], s98 offen sc1
NOSTAT:
    s_mov_b64 exec, -1
    s_waitcnt lgkmcnt(0)
    """)
    stamp()
    if WOPOS == "afterO":
        ldWO()
    a(f"""
    s_lshr_b32 s98, s36, 2        ; hh
    s_lshl_b32 s99, s35, 2
    s_add_u32 s98, s98, s99       ; grp*4+hh
    s_lshl_b32 s79, s35, 4
    s_add_u32 s79, s79, s36
    s_lshl_b32 s79, s79, 7
    s_add_u32 s79, s79, {OFLAG}
    s_lshl_b32 s97, s98, 8
    s_add_u32 s97, s97, {OSTAT}
    s_lshl_b32 s78, s35, 16
    s_lshr_b32 s98, s36, 2
    s_lshl_b32 s98, s98, 10
    s_add_u32 s78, s78, s98
    s_lshl_b32 s98, s39, 7
    s_add_u32 s78, s78, s98
    s_add_u32 s78, s78, {OREC}
    v_lshlrev_b32 v12, 12, v3
    v_lshlrev_b32 v13, 5, v2
    v_add_u32 v12, v12, v13
    v_lshlrev_b32 v13, 4, v3
    v_lshlrev_b32 v11, 5, v3
    v_lshlrev_b32 v14, 4, v2
    v_add_u32 v11, v11, v14
    s_lshl_b32 s99, s39, 9
    v_add_u32 v11, s99, v11
    """)
    if hint2: hintpoll("OH", "s79")
    stamp()
    a(f"""
    buffer_load_dwordx4 v[64:67], v12, s[56:59], s78 offen sc1
    buffer_load_dwordx4 v[68:71], v12, s[56:59], s78 offen offset:16 sc1
    buffer_load_dwordx4 v[72:75], v13, s[56:59], s97 offen sc1
    s_waitcnt vmcnt(3)
    """)
    wmm(12)
    a(f"""
    s_mov_b32 s99, {SPIN}
    s_mov_b32 s98, 0x3FB8AA3B
    s_waitcnt vmcnt(0)
OCHK:
    v_cmpx_eq_u32 vcc, s66, v65
    v_cmpx_eq_u32 vcc, s66, v67
    v_cmpx_eq_u32 vcc, s66, v69
    v_cmpx_eq_u32 vcc, s66, v71
    v_cmpx_eq_u32 vcc, s66, v73
    v_cmpx_eq_u32 vcc, s66, v75
    s_cmp_eq_u64 exec, -1
    s_mov_b64 exec, -1
    s_cbranch_scc1 OOK
    s_sub_u32 s99, s99, 1
    s_cbranch_scc1 OOK
    buffer_load_dwordx4 v[64:67], v12, s[56:59], s78 offen sc1
    buffer_load_dwordx4 v[68:71], v12, s[56:59], s78 offen offset:16 sc1
    buffer_load_dwordx4 v[72:75], v13, s[56:59], s97 offen sc1
    s_waitcnt vmcnt(0)
    s_branch OCHK
OOK:
    s_nop 4
    v_max_f32_dpp v76, v72, v72 row_ror:8 row_mask:0xf bank_mask:0xf
    v_max_f32_dpp v76, v76, v76 row_ror:4 row_mask:0xf bank_mask:0xf
    v_max_f32_dpp v76, v76, v76 row_ror:2 row_mask:0xf bank_mask:0xf
    v_max_f32_dpp v76, v76, v76 row_ror:1 row_mask:0xf bank_mask:0xf
    v_sub_f32 v76, v72, v76
    v_mul_f32 v76, s98, v76
    v_exp_f32 v76, v76
    v_mul_f32 v80, v76, v74       ; f*l
    v_mul_f32 v81, v76, v64
    v_mul_f32 v82, v76, v66
    v_mul_f32 v83, v76, v68
    v_mul_f32 v84, v76, v70
    """)
    for r in (8, 4, 2, 1):
        for k in range(5):
            a(f"v_add_f32_dpp v{80+k}, v{80+k}, v{80+k} row_ror:{r} row_mask:0xf bank_mask:0xf")
    a(f"""
    v_rcp_f32 v80, v80
    v_mul_f32 v81, v81, v80
    v_mul_f32 v82, v82, v80
    v_mul_f32 v83, v83, v80
    v_mul_f32 v84, v84, v80
    v_cvt_pk_bf16_f32 v8, v81, v82
    v_cvt_pk_bf16_f32 v9, v83, v84
    s_mov_b32 s96, 0x00010001
    s_mov_b32 s97, 0x00010001
    """)
    for e in range(8):
        a(f"v_cndmask_b32 v{32+2*e}, 0, v8, s[96:97]")
        a(f"v_cndmask_b32 v{33+2*e}, 0, v9, s[96:97]")
        if e < 7: a("s_lshl_b64 s[96:97], s[96:97], 1")
    wmfma(12)
    a(f"""
    s_mov_b32 exec_hi, 0
    ds_write_b128 v11, v[12:15] offset:{L_QP}
    s_mov_b32 exec_hi, -1
    v_lshlrev_b32 v13, 3, v1      ; l*8
    v_lshlrev_b32 v12, 4, v1      ; l*16
    v_mov_b32 v21, s66
    v_mov_b32 v23, s66
    s_waitcnt lgkmcnt(0)
    s_barrier
    """)
    if ts == 2:
        a("s_memrealtime s[78:79]")
    if ts == 1:
        a(f"""
    s_memrealtime s[96:97]
    s_waitcnt lgkmcnt(0)
    s_add_u32 s84, s30, {TSOFF + (1<<20)}
    s_addc_u32 s85, s31, 0
    s_mov_b32 s86, 0x100000
    s_mov_b32 s87, 0x00020000
    s_lshl_b32 s88, s2, 3
    s_add_u32 s88, s88, s39
    s_lshl_b32 s88, s88, 7
    v_mov_b32 v4, 0
    s_mov_b64 exec, 1
        """)
        regs = [100] + [4+2*k for k in range(stampn[0])] + [96]
        for k, r in enumerate(regs):
            a(f"v_mov_b32 v2, s{r}")
            a(f"v_mov_b32 v3, s{r+1}")
            a(f"buffer_store_dwordx2 v[2:3], v4, s[84:87], s88 offen offset:{k*8}")
            a("s_nop 1")
        a("s_mov_b64 exec, -1")
    a(f"""
    s_cmp_eq_u32 s39, 0
    s_cbranch_scc1 FPUB
    s_cmp_lg_u32 s39, 1
    s_cbranch_scc1 END
    s_cmp_lt_u32 s2, 32
    s_cbranch_scc1 FINAL
    s_branch END
FPUB:
    """)
    for wp in range(8):
        a(f"ds_read_b64 v[{24+2*wp}:{25+2*wp}], v13 offset:{L_QP+wp*512}")
    a(f"""
    s_and_b32 s98, s36, 3
    s_lshl_b32 s98, s98, 6
    s_lshl_b32 s99, s35, 2
    s_add_u32 s98, s98, s99
    s_lshr_b32 s99, s36, 2
    s_add_u32 s98, s98, s99
    s_lshl_b32 s98, s98, 10
    s_add_u32 s98, s98, {FREC}
    s_waitcnt lgkmcnt(4)
    v_pk_add_f32 v[24:25], v[24:25], v[26:27]
    v_pk_add_f32 v[28:29], v[28:29], v[30:31]
    s_waitcnt lgkmcnt(0)
    v_pk_add_f32 v[32:33], v[32:33], v[34:35]
    v_pk_add_f32 v[36:37], v[36:37], v[38:39]
    v_pk_add_f32 v[24:25], v[24:25], v[28:29]
    v_pk_add_f32 v[32:33], v[32:33], v[36:37]
    v_add_f32 v20, v24, v32
    v_add_f32 v22, v25, v33
    buffer_store_dwordx4 v[20:23], v12, s[56:59], s98 offen sc1
    """)
    nst = stampn[0]
    def dump_ts(slot0, extra=None):
        a(f"""
    s_memrealtime s[96:97]
    s_waitcnt lgkmcnt(0)
    s_add_u32 s84, s30, {TSOFF}
    s_addc_u32 s85, s31, 0
    s_mov_b32 s86, 0x100000
    s_mov_b32 s87, 0x00020000
    s_lshl_b32 s88, s2, 9
    v_mov_b32 v1, 0
    s_mov_b64 exec, 1
        """)
        regs = [100] + [4+2*k for k in range(nst)] + [96]
        for k, r in enumerate(regs):
            a(f"v_mov_b32 v2, s{r}")
            a(f"v_mov_b32 v3, s{r+1}")
            a(f"buffer_store_dwordx2 v[2:3], v1, s[84:87], s88 offen offset:{(slot0+k)*8}")
            a("s_nop 1")
        return len(regs)
    if ts == 2:
        a("""
    s_memrealtime s[96:97]
    s_waitcnt lgkmcnt(0)
    s_mov_b32 s84, s28
    s_mov_b32 s85, s29
    s_mov_b32 s86, 256
    s_mov_b32 s87, 0x00020000
    v_mov_b32 v1, 0
    s_mov_b64 exec, 1
    s_not_b32 s99, s100
    v_mov_b32 v2, s99
    buffer_atomic_umax v2, v1, s[84:87], 0 offen offset:0
        """)
        regs = [100] + [4+2*k for k in range(nst)] + [78, 96]
        for k, r in enumerate(regs):
            a(f"v_mov_b32 v{3+k}, s{r}")
            a(f"buffer_atomic_umax v{3+k}, v1, s[84:87], 0 offen offset:{(1+k)*4}")
    if ts == 1:
        n = dump_ts(0)
        a(f"""
    v_mov_b32 v2, {n+1}
    v_mov_b32 v3, 0
    buffer_store_dwordx2 v[2:3], v1, s[84:87], s88 offen offset:{63*8}
    s_cmp_lt_u32 s2, 32
    s_cbranch_scc1 END
    v_mov_b32 v2, s96
    v_mov_b32 v3, s97
    buffer_store_dwordx2 v[2:3], v1, s[84:87], s88 offen offset:{n*8}
        """)
    a(f"""
    s_branch END
FINAL:
    s_mov_b32 s44, s24            ; gate_w
    s_mov_b32 s45, s25
    s_mov_b32 s46, 1024
    s_mov_b32 s47, 0x00020000
    v_lshlrev_b32 v12, 4, v1      ; l*16
    buffer_load_dwordx4 v[64:67], v12, s[60:63], 0 offen
    buffer_load_dwordx4 v[68:71], v12, s[44:47], 0 offen
    v_lshrrev_b32 v13, 3, v1
    v_lshlrev_b32 v13, 10, v13
    v_and_b32 v14, 7, v1
    v_lshlrev_b32 v14, 4, v14
    v_add_u32 v13, v13, v14
    s_lshr_b32 s98, s2, 3
    s_lshl_b32 s98, s98, 16
    s_and_b32 s99, s2, 7
    s_lshl_b32 s99, s99, 7
    s_add_u32 s98, s98, s99
    s_add_u32 s80, s98, {FREC}
    """)
    for j in range(1, 8): a(f"s_add_u32 s{80+j}, s80, {j*8192}")
    def recloads():
        for j in range(8):
            a(f"buffer_load_dwordx4 v[{96+4*j}:{99+4*j}], v13, s[56:59], s{80+j} offen sc1")
    recloads()
    a("s_waitcnt vmcnt(8)")
    for k in range(4):
        a(f"v_lshlrev_b32 v{72+2*k}, 16, v{64+k}")
        a(f"v_and_b32 v{73+2*k}, 0xffff0000, v{64+k}")
        a(f"v_lshlrev_b32 v{80+2*k}, 16, v{68+k}")
        a(f"v_and_b32 v{81+2*k}, 0xffff0000, v{68+k}")
    for k in range(8): a(f"v_mul_f32 v{72+k}, v{72+k}, v{80+k}")
    for k in range(4): a(f"v_cvt_pk_bf16_f32 v{80+k}, v{72+2*k}, v{73+2*k}")
    for k in range(4):
        a(f"v_lshlrev_b32 v{72+2*k}, 16, v{80+k}")
        a(f"v_and_b32 v{73+2*k}, 0xffff0000, v{80+k}")
    a(f"""
    v_add_f32 v72, v72, v73
    v_add_f32 v74, v74, v75
    v_add_f32 v76, v76, v77
    v_add_f32 v78, v78, v79
    v_add_f32 v72, v72, v74
    v_add_f32 v76, v76, v78
    v_add_f32 v72, v72, v76
    v_add_f32_dpp v72, v72, v72 row_ror:8 row_mask:0xf bank_mask:0xf
    v_add_f32_dpp v72, v72, v72 row_ror:4 row_mask:0xf bank_mask:0xf
    v_add_f32_dpp v72, v72, v72 row_ror:2 row_mask:0xf bank_mask:0xf
    v_add_f32_dpp v72, v72, v72 row_ror:1 row_mask:0xf bank_mask:0xf
    v_mov_b32 v73, v72
    v_permlane16_swap_b32 v72, v73
    v_add_f32 v72, v72, v73
    v_mov_b32 v73, v72
    v_permlane32_swap_b32 v72, v73
    v_add_f32 v72, v72, v73
    v_cvt_pk_bf16_f32 v72, v72, v72
    v_lshlrev_b32 v72, 16, v72          ; bf16(sum)
    v_mul_f32 v72, 0xBFB8AA3B, v72      ; -log2e * s
    v_exp_f32 v72, v72
    v_add_f32 v72, 1.0, v72
    v_rcp_f32 v72, v72
    v_cvt_pk_bf16_f32 v72, v72, v72
    v_lshlrev_b32 v72, 16, v72          ; g (bf16)
    v_sub_f32 v73, 1.0, v72
    v_cvt_pk_bf16_f32 v73, v73, v73
    v_lshlrev_b32 v73, 16, v73          ; 1-g (bf16)
    s_mov_b32 s96, 0
    s_mov_b32 s97, -1
    v_cndmask_b32 v72, v72, v73, s[96:97]
    v_and_b32 v14, 7, v1
    v_lshlrev_b32 v14, 2, v14
    v_lshrrev_b32 v15, 4, v1
    v_and_b32 v15, 1, v15
    v_lshlrev_b32 v15, 1, v15
    v_add_u32 v14, v14, v15
    s_lshl_b32 s98, s2, 5
    s_mov_b32 s44, s26
    s_mov_b32 s45, s27
    s_mov_b32 s99, {SPIN}
    s_waitcnt vmcnt(0)
FCHK:
    """)
    for j in range(8):
        a(f"v_cmpx_eq_u32 vcc, s66, v{97+4*j}")
        a(f"v_cmpx_eq_u32 vcc, s66, v{99+4*j}")
    a(f"""
    s_cmp_eq_u64 exec, -1
    s_mov_b64 exec, -1
    s_cbranch_scc1 FOK
    s_sub_u32 s99, s99, 1
    s_cbranch_scc1 FOK
    """)
    recloads()
    a(f"""
    s_waitcnt vmcnt(0)
    s_branch FCHK
FOK:
    v_add_f32 v96, v96, v100
    v_add_f32 v98, v98, v102
    v_add_f32 v104, v104, v108
    v_add_f32 v106, v106, v110
    v_add_f32 v112, v112, v116
    v_add_f32 v114, v114, v118
    v_add_f32 v120, v120, v124
    v_add_f32 v122, v122, v126
    v_add_f32 v96, v96, v104      ; A0
    v_add_f32 v112, v112, v120    ; B0
    v_add_f32 v98, v98, v106      ; A1
    v_add_f32 v114, v114, v122    ; B1
    v_permlane32_swap_b32 v96, v112
    v_permlane32_swap_b32 v98, v114
    v_add_f32 v96, v96, v112
    v_add_f32 v98, v98, v114
    v_permlane16_swap_b32 v96, v98
    v_add_f32 v96, v96, v98
    v_add_f32_dpp v96, v96, v96 row_ror:8 row_mask:0xf bank_mask:0xf
    v_cvt_pk_bf16_f32 v96, v96, v96
    v_lshlrev_b32 v96, 16, v96
    v_mul_f32 v96, v96, v72
    v_cvt_pk_bf16_f32 v96, v96, v96
    v_lshlrev_b32 v96, 16, v96
    v_mov_b32 v97, v96
    v_permlane32_swap_b32 v96, v97
    v_add_f32 v96, v96, v97
    v_cvt_pk_bf16_f32 v96, v96, v96
    s_mov_b32 exec_lo, 0x00ff00ff
    s_mov_b32 exec_hi, 0
    buffer_store_short v96, v14, s[44:47], s98 offen
    s_cmp_lg_u32 s2, 0
    s_cbranch_scc1 NOEPOCH
    s_add_u32 s64, s64, 1
    v_mov_b32 v2, s64
    v_mov_b32 v3, 0
    s_mov_b64 exec, 1
    buffer_store_dword v2, v3, s[56:59], 0 offen
NOEPOCH:
    """)
    if ts == 2:
        a(f"""
    s_waitcnt vmcnt(0)
    s_memrealtime s[96:97]
    s_waitcnt lgkmcnt(0)
    s_mov_b32 s84, s28
    s_mov_b32 s85, s29
    s_mov_b32 s86, 256
    s_mov_b32 s87, 0x00020000
    v_mov_b32 v1, 0
    s_mov_b64 exec, 1
    v_mov_b32 v2, s96
    buffer_atomic_umax v2, v1, s[84:87], 0 offen offset:{15*4}
        """)
    if ts == 1:
        a(f"""
    s_waitcnt vmcnt(0)
    s_memrealtime s[96:97]
    s_waitcnt lgkmcnt(0)
    s_add_u32 s84, s30, {TSOFF}
    s_addc_u32 s85, s31, 0
    s_mov_b32 s86, 0x100000
    s_mov_b32 s87, 0x00020000
    s_lshl_b32 s88, s2, 9
    v_mov_b32 v1, 0
    s_mov_b64 exec, 1
    v_mov_b32 v2, s96
    v_mov_b32 v3, s97
    buffer_store_dwordx2 v[2:3], v1, s[84:87], s88 offen offset:{(nst+2)*8}
        """)
    a("END:")
    open(name, "w").write(a.text(256, 512, LDS_BYTES, 128))
    mk.build(name)
    return a

if __name__ == "__main__":
    kw = {}
    name = sys.argv[1]
    for x in sys.argv[2:]:
        k, v = x.split("=")
        kw[k] = int(v) if v.lstrip("-").isdigit() else v
    a = gen(name, **kw)
    print("nops inserted:", a.nops, "lines:", len(a.lines))
```

```python
import sys
from asmlib import *
import mk

QFLAG = 0x8000
OFLAG = 0x50000
OSTAT = 0x4000
QREC  = 0x10000
FREC  = 0x80000
OREC  = 0x100000
TSOFF = 64 << 20
L_QP = 0
L_QB = 4096
L_MX = 5120
L_LS = 5248
L_OP = 8192
LDS_BYTES = 24576
SPIN = 100000

def gen(name, ts=False, NK1=8, NV1=4, WOPOS="afterQ", hint1=True, hint2=True, BAR0=1, BAR1=1, BARP=1, PF=0, TLBW=0, EG=0, FPIPE=0, HTH=0, FSLEEP=4):
    a = Asm()
    stampn = [0]
    def stamp():
        if not ts: return
        k = stampn[0]; stampn[0] += 1
        assert k < 10
        a(f"s_memrealtime s[{4+2*k}:{5+2*k}]")
    a(f"""
    s_cmp_ge_u32 s2, 256
    s_cbranch_scc1 END
    """)
    if ts: a("s_memrealtime s[100:101]")
    PFCODE = ""
    if PF:
        PFCODE = """s_getpc_b64 s[90:91]
PFBASE:
    v_lshlrev_b32 v120, 4, v0
    v_min_u32 v120, END-PFBASE, v120
    global_load_dword v121, v120, s[90:91]"""
    a(f"""
    s_load_dwordx16 s[4:19], s[0:1], 0
    s_load_dwordx8 s[20:27], s[0:1], 64
    s_load_dwordx4 s[28:31], s[0:1], 96
    {PFCODE}
    s_and_b32 s32, s2, 7          ; xcd
    s_lshr_b32 s33, s2, 3         ; slot
    s_lshr_b32 s34, s33, 4
    s_lshl_b32 s35, s32, 1
    s_add_u32 s35, s35, s34       ; grp
    s_and_b32 s36, s33, 15        ; i
    s_lshr_b32 s37, s35, 3        ; branch
    s_and_b32 s38, s35, 7         ; kvh
    v_lshrrev_b32 v10, 6, v0      ; wave
    v_and_b32 v1, 63, v0          ; lane
    v_readfirstlane_b32 s39, v10  ; w
    v_lshrrev_b32 v2, 4, v1       ; g
    v_and_b32 v3, 15, v1          ; c
    v_lshlrev_b32 v11, 4, v3      ; c*16
    v_lshlrev_b32 v4, 15, v2
    v_add_u32 v4, v4, v11
    v_lshlrev_b32 v7, 12, v2
    v_add_u32 v7, v7, v11
    v_lshrrev_b32 v5, 2, v3
    v_lshlrev_b32 v5, 8, v5       ; row*256
    v_lshlrev_b32 v10, 6, v2      ; g*64
    v_add_u32 v5, v5, v10
    v_and_b32 v10, 3, v1
    v_lshlrev_b32 v10, 4, v10
    v_add_u32 v5, v5, v10         ; K voffset
    v_lshlrev_b32 v6, 4, v1       ; V voffset = l*16
    v_lshlrev_b32 v10, 3, v2      ; x voffset = g*8
    s_and_b32 s96, s36, 3
    s_lshr_b32 s97, s36, 2        ; hh
    s_lshl_b32 s98, s38, 2
    s_add_u32 s98, s98, s97
    s_lshl_b32 s68, s96, 20
    s_lshl_b32 s99, s39, 17
    s_add_u32 s68, s68, s99
    s_lshl_b32 s99, s98, 8
    s_add_u32 s68, s68, s99
    s_add_u32 s69, s68, 8192
    s_add_u32 s70, s68, 16384
    s_add_u32 s71, s68, 24576
    s_lshl_b32 s75, s96, 8
    s_lshl_b32 s99, s39, 5
    s_add_u32 s75, s75, s99
    s_lshl_b32 s72, s38, 23
    s_add_u32 s72, s72, {28672*256}
    s_lshl_b32 s99, s36, 16
    s_add_u32 s72, s72, s99
    s_lshl_b32 s99, s39, 13
    s_add_u32 s72, s72, s99       ; K/V soffset
    s_add_u32 s73, s72, 4096
    s_lshl_b32 s74, s98, 17
    s_lshl_b32 s99, s39, 14
    s_add_u32 s74, s74, s99
    s_lshl_b32 s99, s96, 8
    s_add_u32 s74, s74, s99
    s_cmp_eq_u32 s37, 0
    s_mov_b32 s50, 0x400000
    s_mov_b32 s51, 0x00020000
    s_mov_b32 s62, 1024
    s_mov_b32 s63, 0x00020000
    s_mov_b32 s42, 0x4000000
    s_mov_b32 s43, 0x00020000
    s_waitcnt lgkmcnt(0)
    s_cselect_b32 s48, s10, s20   ; wq
    s_cselect_b32 s49, s11, s21
    s_mov_b32 s60, s4             ; x
    s_mov_b32 s61, s5
    buffer_load_dwordx2 v[8:9], v10, s[60:63], s75 offen
    """)
    for j in range(4):
        a(f"buffer_load_dwordx4 v[{48+4*j}:{51+4*j}], v4, s[48:51], s{68+j} offen nt")
    a(f"""
    s_cselect_b32 s40, s6, s16    ; K
    s_cselect_b32 s41, s7, s17
    """)
    if EG:
        a(f"""
    s_mov_b32 s84, s24            ; gate_w
    s_mov_b32 s85, s25
    s_mov_b32 s86, 1024
    s_mov_b32 s87, 0x00020000
    s_cselect_b32 s92, 1, 0
    s_cmp_eq_u32 s39, 1
    s_cselect_b32 s94, 1, 0
    s_cmp_lt_u32 s2, 32
    s_cselect_b32 s94, s94, 0
    s_cmp_eq_u32 s94, 0
    s_cbranch_scc1 SKIPG
    buffer_load_dwordx4 v[96:99], v6, s[60:63], 0 offen
    buffer_load_dwordx4 v[100:103], v6, s[84:87], 0 offen
SKIPG:
    s_cmp_eq_u32 s92, 1
        """)
    if BAR0: a("s_barrier")
    def ldK(j):
        a(f"buffer_load_dwordx4 v[{64+4*j}:{67+4*j}], v5, s[40:43], s{72 + (j>>2)} offen offset:{(j&3)*1024} nt")
    def ldV(j):
        a(f"buffer_load_dwordx4 v[{96+4*j}:{99+4*j}], v6, s[44:47], s{72 + (j>>2)} offen offset:{(j&3)*1024} nt")
    def ldWO():
        for j in range(4):
            a(f"buffer_load_dwordx4 v[{48+4*j}:{51+4*j}], v7, s[52:55], s74 offen offset:{j*1024} nt")
    for j in range(NK1): ldK(j)
    TLBCODE = ""
    if TLBW:
        TLBCODE = """s_load_dword s92, s[44:45], s72
    s_load_dword s93, s[52:53], s74"""
    a(f"""
    s_load_dword s64, s[30:31], 0     ; epoch
    s_cselect_b32 s44, s8, s18    ; V
    s_cselect_b32 s45, s9, s19
    s_mov_b32 s46, 0x4000000
    s_mov_b32 s47, 0x00020000
    s_cselect_b32 s52, s12, s22   ; wo
    s_cselect_b32 s53, s13, s23
    s_mov_b32 s54, 0x400000
    s_mov_b32 s55, 0x00020000
    s_mov_b32 s56, s30            ; ws
    s_mov_b32 s57, s31
    s_mov_b32 s58, 0x400000
    s_mov_b32 s59, 0x00020000
    {TLBCODE}
    s_mov_b32 s76, 0x05040100
    s_mov_b32 s77, 0x07060302
    v_lshlrev_b32 v11, 5, v3
    v_lshlrev_b32 v12, 4, v2
    v_add_u32 v11, v11, v12
    s_lshl_b32 s99, s39, 9
    v_add_u32 v11, s99, v11       ; v11 = w*512 + c*32 + g*16
    """)
    stamp()
    a(f"s_waitcnt vmcnt({4+NK1})")
    a("s_mov_b32 s96, 0x00010001\ns_mov_b32 s97, 0x00010001")
    for e in range(8):
        a(f"v_cndmask_b32 v{32+2*e}, 0, v8, s[96:97]")
        a(f"v_cndmask_b32 v{33+2*e}, 0, v9, s[96:97]")
        if e < 7: a("s_lshl_b64 s[96:97], s[96:97], 1")
    def wmm(acc):
        for e in range(8):
            pr = e >> 1; sel = "s76" if (e & 1) == 0 else "s77"
            a(f"v_perm_b32 v{16+2*e}, v{52+pr}, v{48+pr}, {sel}")
            a(f"v_perm_b32 v{17+2*e}, v{60+pr}, v{56+pr}, {sel}")
    def wmfma(acc):
        for e in range(8):
            c = "0" if e == 0 else f"v[{acc}:{acc+3}]"
            a(f"v_mfma_f32_16x16x16_bf16 v[{acc}:{acc+3}], v[{32+2*e}:{33+2*e}], v[{16+2*e}:{17+2*e}], {c}")
    def gatecalc(X, G, T):
        for k in range(4):
            a(f"v_lshlrev_b32 v{T+2*k}, 16, v{X+k}")
            a(f"v_and_b32 v{T+1+2*k}, 0xffff0000, v{X+k}")
            a(f"v_lshlrev_b32 v{T+8+2*k}, 16, v{G+k}")
            a(f"v_and_b32 v{T+9+2*k}, 0xffff0000, v{G+k}")
        for k in range(8): a(f"v_mul_f32 v{T+k}, v{T+k}, v{T+8+k}")
        for k in range(4): a(f"v_cvt_pk_bf16_f32 v{T+8+k}, v{T+2*k}, v{T+1+2*k}")
        for k in range(4):
            a(f"v_lshlrev_b32 v{T+2*k}, 16, v{T+8+k}")
            a(f"v_and_b32 v{T+1+2*k}, 0xffff0000, v{T+8+k}")
        a(f"""
    v_add_f32 v{T}, v{T}, v{T+1}
    v_add_f32 v{T+2}, v{T+2}, v{T+3}
    v_add_f32 v{T+4}, v{T+4}, v{T+5}
    v_add_f32 v{T+6}, v{T+6}, v{T+7}
    v_add_f32 v{T}, v{T}, v{T+2}
    v_add_f32 v{T+4}, v{T+4}, v{T+6}
    v_add_f32 v{T}, v{T}, v{T+4}
    v_add_f32_dpp v{T}, v{T}, v{T} row_ror:8 row_mask:0xf bank_mask:0xf
    v_add_f32_dpp v{T}, v{T}, v{T} row_ror:4 row_mask:0xf bank_mask:0xf
    v_add_f32_dpp v{T}, v{T}, v{T} row_ror:2 row_mask:0xf bank_mask:0xf
    v_add_f32_dpp v{T}, v{T}, v{T} row_ror:1 row_mask:0xf bank_mask:0xf
    v_mov_b32 v{T+1}, v{T}
    v_permlane16_swap_b32 v{T}, v{T+1}
    v_add_f32 v{T}, v{T}, v{T+1}
    v_mov_b32 v{T+1}, v{T}
    v_permlane32_swap_b32 v{T}, v{T+1}
    v_add_f32 v{T}, v{T}, v{T+1}
    v_cvt_pk_bf16_f32 v{T}, v{T}, v{T}
    v_lshlrev_b32 v{T}, 16, v{T}          ; bf16(sum)
    v_mul_f32 v{T}, 0xBFB8AA3B, v{T}      ; -log2e * s
    v_exp_f32 v{T}, v{T}
    v_add_f32 v{T}, 1.0, v{T}
    v_rcp_f32 v{T}, v{T}
    v_cvt_pk_bf16_f32 v{T}, v{T}, v{T}
    v_lshlrev_b32 v{T}, 16, v{T}          ; g (bf16)
    v_sub_f32 v{T+1}, 1.0, v{T}
    v_cvt_pk_bf16_f32 v{T+1}, v{T+1}, v{T+1}
    v_lshlrev_b32 v{T+1}, 16, v{T+1}          ; 1-g (bf16)
        """)
    a(f"s_waitcnt vmcnt({NK1})")
    stamp()
    wmm(12)
    wmfma(12)
    a(f"""
    s_waitcnt lgkmcnt(0)
    s_mul_i32 s66, s64, 0x9E3779B1
    s_add_u32 s66, s66, 0x3C6EF372   ; T
    s_mov_b32 s67, s66
    s_mov_b32 exec_hi, 0
    ds_write_b128 v11, v[12:15] offset:{L_QP}
    s_mov_b32 exec_hi, -1
    v_and_b32 v12, 7, v1
    v_lshlrev_b32 v13, 3, v12
    s_lshl_b32 s99, s39, 6
    v_add_u32 v13, s99, v13       ; w*64 + p*8
    v_lshlrev_b32 v12, 4, v12
    s_lshl_b32 s99, s39, 7
    v_add_u32 v12, s99, v12
    s_lshl_b32 s98, s35, 4
    s_add_u32 s98, s98, s36
    s_lshl_b32 s78, s98, 10
    s_add_u32 s78, s78, {QREC}
    v_mov_b32 v21, s66
    v_mov_b32 v23, s66
    s_waitcnt lgkmcnt(0)
    s_barrier
    """)
    for wp in range(8):
        a(f"ds_read_b64 v[{24+2*(wp&3)}:{25+2*(wp&3)}], v13 offset:{L_QP+wp*512}" if wp < 4 else
          f"ds_read_b64 v[{32+2*(wp&3)}:{33+2*(wp&3)}], v13 offset:{L_QP+wp*512}")
    a(f"""
    s_waitcnt lgkmcnt(4)
    v_pk_add_f32 v[24:25], v[24:25], v[26:27]
    v_pk_add_f32 v[28:29], v[28:29], v[30:31]
    s_waitcnt lgkmcnt(0)
    v_pk_add_f32 v[32:33], v[32:33], v[34:35]
    v_pk_add_f32 v[36:37], v[36:37], v[38:39]
    v_pk_add_f32 v[24:25], v[24:25], v[28:29]
    v_pk_add_f32 v[32:33], v[32:33], v[36:37]
    v_add_f32 v20, v24, v32
    v_add_f32 v22, v25, v33
    s_mov_b64 exec, 0xff
    buffer_store_dwordx4 v[20:23], v12, s[56:59], s78 offen sc1
    s_cmp_lg_u32 s39, 0
    s_cbranch_scc1 NOQFLAG
    s_lshl_b32 s99, s35, 11
    s_add_u32 s99, s99, {QFLAG}
    s_mov_b64 exec, 0xffff
    v_lshlrev_b32 v12, 7, v1
    s_lshl_b32 s98, s36, 2
    s_add_u32 s99, s99, s98
    buffer_store_dword v21, v12, s[56:59], s99 offen sc1
NOQFLAG:
    s_mov_b64 exec, -1
    """)
    stamp()
    if EG:
        a("s_cmp_eq_u32 s94, 0\ns_cbranch_scc1 SKIPG2")
        gatecalc(96, 100, 104)
        a("v_readfirstlane_b32 s90, v104\nv_readfirstlane_b32 s91, v105\nSKIPG2:")
    if BARP: a("s_barrier")
    nafter = 0
    for j in range(NK1, 8): ldK(j)
    for j in range(NV1): ldV(j)
    def hintpoll(lbl, offreg, th=0):
        a(f"""
    s_cmp_lg_u32 s39, 0
    s_cbranch_scc1 {lbl}_B
    s_mov_b32 s99, {SPIN}
{lbl}:
    s_load_dwordx16 s[80:95], s[30:31], {offreg} glc
    s_sub_u32 s99, s99, 1
    s_cbranch_scc1 {lbl}_X
    s_waitcnt lgkmcnt(0)
        """)
        if th:
            a("s_mov_b32 s98, 0")
            for k in range(8):
                a(f"s_cmp_eq_u64 s[{80+2*k}:{81+2*k}], s[66:67]")
                a("s_addc_u32 s98, s98, 0")
            a(f"s_cmp_lt_u32 s98, {th}")
        else:
            for k in range(8):
                a(f"s_xor_b64 s[{80+2*k}:{81+2*k}], s[{80+2*k}:{81+2*k}], s[66:67]")
            for k in range(1, 8):
                a(f"s_or_b64 s[80:81], s[80:81], s[{80+2*k}:{81+2*k}]")
        a(f"""
    s_cbranch_scc1 {lbl}
{lbl}_X:
    s_waitcnt lgkmcnt(0)
{lbl}_B:
    s_barrier
        """)
    a(f"""
    s_lshl_b32 s79, s35, 4
    s_add_u32 s79, s79, s36
    s_lshl_b32 s79, s79, 7
    s_add_u32 s79, s79, {QFLAG}
    v_lshrrev_b32 v12, 5, v1
    v_and_b32 v13, 31, v1
    v_lshlrev_b32 v14, 10, v12
    v_lshlrev_b32 v15, 4, v13
    v_add_u32 v14, v14, v15       ; v14 = Q voffset
    s_lshr_b32 s98, s39, 1        ; hq
    s_and_b32 s97, s39, 1         ; hf
    s_lshl_b32 s78, s35, 14
    s_lshl_b32 s99, s98, 12
    s_add_u32 s78, s78, s99
    s_lshl_b32 s99, s97, 9
    s_add_u32 s78, s78, s99
    s_add_u32 s78, s78, {QREC}
    v_lshlrev_b32 v15, 2, v13
    v_lshlrev_b32 v12, 1, v12
    v_add_u32 v15, v15, v12
    s_lshl_b32 s99, s98, 8
    s_lshl_b32 s97, s97, 7
    s_add_u32 s99, s99, s97
    v_add_u32 v15, s99, v15
    """)
    if hint1: hintpoll("QH", "s79")
    stamp()
    a(f"""
    buffer_load_dwordx4 v[16:19], v14, s[56:59], s78 offen sc1
    buffer_load_dwordx4 v[20:23], v14, s[56:59], s78 offen offset:2048 sc1
    """)
    if BAR1: a("s_barrier")
    for j in range(NV1, 8): ldV(j)
    nafter = 8 - NV1
    if WOPOS == "withV":
        ldWO(); nafter += 4
    a(f"""
    v_lshrrev_b32 v12, 2, v3
    v_lshlrev_b32 v12, 8, v12
    v_lshlrev_b32 v13, 6, v2
    v_add_u32 v12, v12, v13
    v_and_b32 v13, 3, v1
    v_lshlrev_b32 v13, 4, v13
    v_add_u32 v12, v12, v13
    s_mov_b32 s99, {SPIN}
    s_waitcnt vmcnt({nafter})
QCHK:
    v_cmpx_eq_u32 vcc, s66, v17
    v_cmpx_eq_u32 vcc, s66, v19
    v_cmpx_eq_u32 vcc, s66, v21
    v_cmpx_eq_u32 vcc, s66, v23
    s_cmp_eq_u64 exec, -1
    s_mov_b64 exec, -1
    s_cbranch_scc1 QOK
    s_sub_u32 s99, s99, 1
    s_cbranch_scc1 QOK
    buffer_load_dwordx4 v[16:19], v14, s[56:59], s78 offen sc1
    buffer_load_dwordx4 v[20:23], v14, s[56:59], s78 offen offset:2048 sc1
    s_waitcnt vmcnt(0)
    s_branch QCHK
QOK:
    v_add_f32 v16, v16, v20
    v_add_f32 v18, v18, v22
    v_permlane32_swap_b32 v16, v18
    v_add_f32 v16, v16, v18
    v_cvt_pk_bf16_f32 v16, v16, v16
    ds_write_b16 v15, v16 offset:{L_QB}
    """)
    stamp()
    if WOPOS == "afterQ":
        ldWO()
    a(f"""
    s_waitcnt lgkmcnt(0)
    s_barrier
    ds_read_b128 v[8:11], v12 offset:{L_QB}
    v_lshrrev_b32 v13, 2, v3
    v_lshlrev_b32 v13, 5, v13
    s_lshl_b32 s99, s39, 2
    v_add_u32 v14, s99, v13       ; h*32 + w*4
    s_waitcnt lgkmcnt(0)
    """)
    def Dj(j): return 16 + 4*j if j < 4 else 64 + 4*(j-4)
    for j in range(8):
        a(f"v_mfma_f32_16x16x32_bf16 v[{Dj(j)}:{Dj(j)+3}], v[{64+4*j}:{67+4*j}], v[8:11], 0")
    for half in range(2):
        js = range(4*half, 4*half+4)
        for j in js: a(f"v_mov_b32_dpp v{32+j}, v{Dj(j)} quad_perm:[0,0,0,0] row_mask:0xf bank_mask:0xf")
        for b in range(1, 4):
            for j in js: a(f"v_add_f32_dpp v{32+j}, v{Dj(j)+b}, v{32+j} quad_perm:[{b},{b},{b},{b}] row_mask:0xf bank_mask:0xf")
    a("s_mov_b32 s98, 0x3DB504F3")
    for u in range(4): a(f"v_cvt_pk_bf16_f32 v{40+u}, v{32+2*u}, v{33+2*u}")
    for u in range(4):
        a(f"v_lshlrev_b32 v{32+2*u}, 16, v{40+u}")
        a(f"v_and_b32 v{33+2*u}, 0xffff0000, v{40+u}")
    for j in range(8): a(f"v_mul_f32 v{32+j}, s98, v{32+j}")
    for u in range(4): a(f"v_cvt_pk_bf16_f32 v{40+u}, v{32+2*u}, v{33+2*u}")
    for u in range(4):
        a(f"v_lshlrev_b32 v{32+2*u}, 16, v{40+u}")
        a(f"v_and_b32 v{33+2*u}, 0xffff0000, v{40+u}")
    a(f"""
    v_max3_f32 v40, v32, v33, v34
    v_max3_f32 v41, v35, v36, v37
    v_max3_f32 v40, v40, v38, v39
    v_max_f32 v40, v40, v41
    v_mov_b32 v41, v40
    v_permlane32_swap_b32 v40, v41
    v_max_f32 v40, v40, v41
    v_mov_b32 v41, v40
    v_permlane16_swap_b32 v40, v41
    v_max_f32 v40, v40, v41
    s_mov_b64 exec, 0x1111
    ds_write_b32 v14, v40 offset:{L_MX}
    s_mov_b64 exec, -1
    s_waitcnt lgkmcnt(0)
    s_barrier
    ds_read_b128 v[40:43], v13 offset:{L_MX}
    ds_read_b128 v[44:47], v13 offset:{L_MX+16}
    s_mov_b32 s98, 0x3FB8AA3B     ; log2(e)
    s_waitcnt lgkmcnt(0)
    v_max3_f32 v40, v40, v41, v42
    v_max3_f32 v44, v44, v45, v46
    v_max3_f32 v40, v40, v43, v47
    v_max_f32 v10, v40, v44
    """)
    for j in range(8): a(f"v_sub_f32 v{32+j}, v{32+j}, v10")
    for j in range(8): a(f"v_mul_f32 v{32+j}, s98, v{32+j}")
    for j in range(8): a(f"v_exp_f32 v{32+j}, v{32+j}")
    a(f"""
    v_add_f32 v40, v32, v33
    v_add_f32 v41, v34, v35
    v_add_f32 v42, v36, v37
    v_add_f32 v43, v38, v39
    v_add_f32 v40, v40, v41
    v_add_f32 v42, v42, v43
    v_add_f32 v40, v40, v42
    v_cvt_pk_bf16_f32 v24, v32, v33
    v_cvt_pk_bf16_f32 v25, v34, v35
    v_cvt_pk_bf16_f32 v26, v36, v37
    v_cvt_pk_bf16_f32 v27, v38, v39
    v_mov_b32 v41, v40
    v_permlane32_swap_b32 v40, v41
    v_add_f32 v40, v40, v41
    v_mov_b32 v41, v40
    v_permlane16_swap_b32 v40, v41
    v_add_f32 v40, v40, v41
    s_mov_b64 exec, 0x1111
    ds_write_b32 v14, v40 offset:{L_LS}
    s_mov_b64 exec, -1
    s_mov_b32 s96, 0x11111111
    s_mov_b32 s97, 0x11111111
    """)
    for v in range(4):
        for u in range(4):
            a(f"v_cndmask_b32 v{32+4*v+u}, 0, v{24+u}, s[96:97]")
        if v < 3: a("s_lshl_b64 s[96:97], s[96:97], 1")
    stamp()
    if WOPOS == "afterP": ldWO()
    a(f"""
    v_lshlrev_b32 v11, 9, v2
    v_lshlrev_b32 v12, 5, v3
    v_add_u32 v11, v11, v12
    s_lshl_b32 s99, s39, 11
    v_add_u32 v11, s99, v11
    v_and_b32 v12, 31, v1
    v_lshlrev_b32 v13, 3, v12
    s_lshl_b32 s99, s39, 8
    v_add_u32 v13, s99, v13
    v_lshlrev_b32 v12, 4, v12
    s_lshl_b32 s98, s35, 4
    s_add_u32 s98, s98, s36
    s_lshl_b32 s78, s98, 12
    s_lshl_b32 s99, s39, 9
    s_add_u32 s78, s78, s99
    s_add_u32 s78, s78, {OREC}
    s_lshr_b32 s98, s39, 1        ; h
    s_lshl_b32 s99, s98, 2
    v_readlane_b32 s65, v10, s99
    s_lshl_b32 s99, s98, 5
    v_mov_b32 v14, s99
    """)
    wo_after = 4 if WOPOS in ("afterQ", "withV", "afterP") else 0
    def pv(half):
        V0 = 96 + 16*half; B0 = 64 + 16*half
        for e in range(8):
            pr = e >> 1; sel = "s76" if (e & 1) == 0 else "s77"
            a(f"v_perm_b32 v{B0+2*e}, v{V0+4+pr}, v{V0+pr}, {sel}")
            a(f"v_perm_b32 v{B0+2*e+1}, v{V0+12+pr}, v{V0+8+pr}, {sel}")
        for e in [0, 4, 1, 5, 2, 6, 3, 7]:
            acc = 16 if e < 4 else 20
            v = e & 3
            c = "0" if (half == 0 and v == 0) else f"v[{acc}:{acc+3}]"
            a(f"v_mfma_f32_16x16x16_bf16 v[{acc}:{acc+3}], v[{32+4*v+2*half}:{33+4*v+2*half}], v[{B0+2*e}:{B0+2*e+1}], {c}")
    a(f"s_waitcnt vmcnt({4+wo_after})")
    pv(0)
    a(f"s_waitcnt vmcnt({wo_after})")
    stamp()
    if WOPOS == "afterV": ldWO()
    pv(1)
    a(f"""
    ds_write_b128 v11, v[16:19] offset:{L_OP}
    ds_write_b128 v11, v[20:23] offset:{L_OP+16}
    v_mov_b32 v21, s66
    v_mov_b32 v23, s66
    s_waitcnt lgkmcnt(0)
    s_barrier
    """)
    for wp in range(8):
        a(f"ds_read_b64 v[{24+2*wp}:{25+2*wp}], v13 offset:{L_OP+wp*2048}")
    a(f"""
    ds_read_b128 v[40:43], v14 offset:{L_LS}
    ds_read_b128 v[44:47], v14 offset:{L_LS+16}
    s_waitcnt lgkmcnt(6)
    v_pk_add_f32 v[24:25], v[24:25], v[26:27]
    v_pk_add_f32 v[28:29], v[28:29], v[30:31]
    s_waitcnt lgkmcnt(2)
    v_pk_add_f32 v[32:33], v[32:33], v[34:35]
    v_pk_add_f32 v[36:37], v[36:37], v[38:39]
    v_pk_add_f32 v[24:25], v[24:25], v[28:29]
    v_pk_add_f32 v[32:33], v[32:33], v[36:37]
    v_add_f32 v20, v24, v32
    v_add_f32 v22, v25, v33
    s_mov_b32 exec_hi, 0
    buffer_store_dwordx4 v[20:23], v12, s[56:59], s78 offen sc1
    s_and_b32 s99, s39, 1
    s_cmp_lg_u32 s99, 0
    s_cbranch_scc1 NOSTAT
    s_waitcnt lgkmcnt(0)
    v_pk_add_f32 v[40:41], v[40:41], v[42:43]
    v_pk_add_f32 v[44:45], v[44:45], v[46:47]
    v_pk_add_f32 v[40:41], v[40:41], v[44:45]
    v_mov_b32 v24, s65
    v_mov_b32 v25, s66
    v_add_f32 v26, v40, v41
    v_mov_b32 v27, s66
    s_lshl_b32 s98, s35, 2
    s_lshr_b32 s99, s39, 1
    s_add_u32 s98, s98, s99
    s_lshl_b32 s97, s98, 8
    s_lshl_b32 s99, s36, 4
    s_add_u32 s97, s97, s99
    s_add_u32 s97, s97, {OSTAT}
    s_lshl_b32 s98, s98, 9
    s_lshl_b32 s99, s36, 2
    s_add_u32 s98, s98, s99
    s_add_u32 s98, s98, {OFLAG}
    v_lshlrev_b32 v28, 7, v1
    s_mov_b64 exec, 1
    buffer_store_dwordx4 v[24:27], v28, s[56:59], s97 offen sc1
    s_mov_b64 exec, 15
    buffer_store_dword v25, v28, s[56:59], s98 offen sc1
NOSTAT:
    s_mov_b64 exec, -1
    s_waitcnt lgkmcnt(0)
    """)
    stamp()
    if WOPOS == "afterO":
        ldWO()
    a(f"""
    s_lshr_b32 s98, s36, 2        ; hh
    s_lshl_b32 s99, s35, 2
    s_add_u32 s98, s98, s99       ; grp*4+hh
    s_lshl_b32 s79, s35, 4
    s_add_u32 s79, s79, s36
    s_lshl_b32 s79, s79, 7
    s_add_u32 s79, s79, {OFLAG}
    s_lshl_b32 s97, s98, 8
    s_add_u32 s97, s97, {OSTAT}
    s_lshl_b32 s78, s35, 16
    s_lshr_b32 s98, s36, 2
    s_lshl_b32 s98, s98, 10
    s_add_u32 s78, s78, s98
    s_lshl_b32 s98, s39, 7
    s_add_u32 s78, s78, s98
    s_add_u32 s78, s78, {OREC}
    v_lshlrev_b32 v12, 12, v3
    v_lshlrev_b32 v13, 5, v2
    v_add_u32 v12, v12, v13
    v_lshlrev_b32 v13, 4, v3
    v_lshlrev_b32 v11, 5, v3
    v_lshlrev_b32 v14, 4, v2
    v_add_u32 v11, v11, v14
    s_lshl_b32 s99, s39, 9
    v_add_u32 v11, s99, v11
    """)
    if hint2: hintpoll("OH", "s79", HTH)
    stamp()
    a(f"""
    buffer_load_dwordx4 v[64:67], v12, s[56:59], s78 offen sc1
    buffer_load_dwordx4 v[68:71], v12, s[56:59], s78 offen offset:16 sc1
    buffer_load_dwordx4 v[72:75], v13, s[56:59], s97 offen sc1
    s_waitcnt vmcnt(3)
    """)
    wmm(12)
    a(f"""
    s_mov_b32 s99, {SPIN}
    s_mov_b32 s98, 0x3FB8AA3B
    s_waitcnt vmcnt(0)
OCHK:
    v_cmpx_eq_u32 vcc, s66, v65
    v_cmpx_eq_u32 vcc, s66, v67
    v_cmpx_eq_u32 vcc, s66, v69
    v_cmpx_eq_u32 vcc, s66, v71
    v_cmpx_eq_u32 vcc, s66, v73
    v_cmpx_eq_u32 vcc, s66, v75
    s_not_b64 exec, exec
    s_cbranch_scc0 OOK
    s_sub_u32 s99, s99, 1
    s_cbranch_scc1 OOK
    buffer_load_dwordx4 v[64:67], v12, s[56:59], s78 offen sc1
    buffer_load_dwordx4 v[68:71], v12, s[56:59], s78 offen offset:16 sc1
    buffer_load_dwordx4 v[72:75], v13, s[56:59], s97 offen sc1
    s_mov_b64 exec, -1
    s_waitcnt vmcnt(0)
    s_branch OCHK
OOK:
    s_mov_b64 exec, -1
    s_nop 4
    v_max_f32_dpp v76, v72, v72 row_ror:8 row_mask:0xf bank_mask:0xf
    v_max_f32_dpp v76, v76, v76 row_ror:4 row_mask:0xf bank_mask:0xf
    v_max_f32_dpp v76, v76, v76 row_ror:2 row_mask:0xf bank_mask:0xf
    v_max_f32_dpp v76, v76, v76 row_ror:1 row_mask:0xf bank_mask:0xf
    v_sub_f32 v76, v72, v76
    v_mul_f32 v76, s98, v76
    v_exp_f32 v76, v76
    v_mul_f32 v80, v76, v74       ; f*l
    v_mul_f32 v81, v76, v64
    v_mul_f32 v82, v76, v66
    v_mul_f32 v83, v76, v68
    v_mul_f32 v84, v76, v70
    """)
    for r in (8, 4, 2, 1):
        for k in range(5):
            a(f"v_add_f32_dpp v{80+k}, v{80+k}, v{80+k} row_ror:{r} row_mask:0xf bank_mask:0xf")
    a(f"""
    v_rcp_f32 v80, v80
    v_mul_f32 v81, v81, v80
    v_mul_f32 v82, v82, v80
    v_mul_f32 v83, v83, v80
    v_mul_f32 v84, v84, v80
    v_cvt_pk_bf16_f32 v8, v81, v82
    v_cvt_pk_bf16_f32 v9, v83, v84
    s_mov_b32 s96, 0x00010001
    s_mov_b32 s97, 0x00010001
    """)
    for e in range(8):
        a(f"v_cndmask_b32 v{32+2*e}, 0, v8, s[96:97]")
        a(f"v_cndmask_b32 v{33+2*e}, 0, v9, s[96:97]")
        if e < 7: a("s_lshl_b64 s[96:97], s[96:97], 1")
    wmfma(12)
    a(f"""
    s_mov_b32 exec_hi, 0
    ds_write_b128 v11, v[12:15] offset:{L_QP}
    s_mov_b32 exec_hi, -1
    v_lshlrev_b32 v13, 3, v1      ; l*8
    v_lshlrev_b32 v12, 4, v1      ; l*16
    v_mov_b32 v21, s66
    v_mov_b32 v23, s66
    s_waitcnt lgkmcnt(0)
    s_barrier
    """)
    if ts == 2:
        a("s_memrealtime s[78:79]")
    if ts == 1:
        a(f"""
    s_memrealtime s[96:97]
    s_waitcnt lgkmcnt(0)
    s_add_u32 s84, s30, {TSOFF + (1<<20)}
    s_addc_u32 s85, s31, 0
    s_mov_b32 s86, 0x100000
    s_mov_b32 s87, 0x00020000
    s_lshl_b32 s88, s2, 3
    s_add_u32 s88, s88, s39
    s_lshl_b32 s88, s88, 7
    v_mov_b32 v4, 0
    s_mov_b64 exec, 1
        """)
        regs = [100] + [4+2*k for k in range(stampn[0])] + [96]
        for k, r in enumerate(regs):
            a(f"v_mov_b32 v2, s{r}")
            a(f"v_mov_b32 v3, s{r+1}")
            a(f"buffer_store_dwordx2 v[2:3], v4, s[84:87], s88 offen offset:{k*8}")
            a("s_nop 1")
        a("s_mov_b64 exec, -1")
    a(f"""
    s_cmp_eq_u32 s39, 0
    s_cbranch_scc1 FPUB
    s_cmp_lg_u32 s39, 1
    s_cbranch_scc1 END
    s_cmp_lt_u32 s2, 32
    s_cbranch_scc1 FINAL
    s_branch END
FPUB:
    """)
    for wp in range(8):
        a(f"ds_read_b64 v[{24+2*wp}:{25+2*wp}], v13 offset:{L_QP+wp*512}")
    a(f"""
    s_and_b32 s98, s36, 3
    s_lshl_b32 s98, s98, 6
    s_lshl_b32 s99, s35, 2
    s_add_u32 s98, s98, s99
    s_lshr_b32 s99, s36, 2
    s_add_u32 s98, s98, s99
    s_lshl_b32 s98, s98, 10
    s_add_u32 s98, s98, {FREC}
    s_waitcnt lgkmcnt(4)
    v_pk_add_f32 v[24:25], v[24:25], v[26:27]
    v_pk_add_f32 v[28:29], v[28:29], v[30:31]
    s_waitcnt lgkmcnt(0)
    v_pk_add_f32 v[32:33], v[32:33], v[34:35]
    v_pk_add_f32 v[36:37], v[36:37], v[38:39]
    v_pk_add_f32 v[24:25], v[24:25], v[28:29]
    v_pk_add_f32 v[32:33], v[32:33], v[36:37]
    v_add_f32 v20, v24, v32
    v_add_f32 v22, v25, v33
    buffer_store_dwordx4 v[20:23], v12, s[56:59], s98 offen sc1
    """)
    nst = stampn[0]
    def dump_ts(slot0, extra=None):
        a(f"""
    s_memrealtime s[96:97]
    s_waitcnt lgkmcnt(0)
    s_add_u32 s84, s30, {TSOFF}
    s_addc_u32 s85, s31, 0
    s_mov_b32 s86, 0x100000
    s_mov_b32 s87, 0x00020000
    s_lshl_b32 s88, s2, 9
    v_mov_b32 v1, 0
    s_mov_b64 exec, 1
        """)
        regs = [100] + [4+2*k for k in range(nst)] + [96]
        for k, r in enumerate(regs):
            a(f"v_mov_b32 v2, s{r}")
            a(f"v_mov_b32 v3, s{r+1}")
            a(f"buffer_store_dwordx2 v[2:3], v1, s[84:87], s88 offen offset:{(slot0+k)*8}")
            a("s_nop 1")
        return len(regs)
    if ts == 2:
        a("""
    s_memrealtime s[96:97]
    s_waitcnt lgkmcnt(0)
    s_mov_b32 s84, s28
    s_mov_b32 s85, s29
    s_mov_b32 s86, 256
    s_mov_b32 s87, 0x00020000
    v_mov_b32 v1, 0
    s_mov_b64 exec, 1
    s_not_b32 s99, s100
    v_mov_b32 v2, s99
    buffer_atomic_umax v2, v1, s[84:87], 0 offen offset:0
        """)
        regs = [100] + [4+2*k for k in range(nst)] + [78, 96]
        for k, r in enumerate(regs):
            a(f"v_mov_b32 v{3+k}, s{r}")
            a(f"buffer_atomic_umax v{3+k}, v1, s[84:87], 0 offen offset:{(1+k)*4}")
    if ts in (1,3):
        n = dump_ts(0)
        a(f"""
    v_mov_b32 v2, {n+1}
    v_mov_b32 v3, 0
    buffer_store_dwordx2 v[2:3], v1, s[84:87], s88 offen offset:{63*8}
    s_cmp_lt_u32 s2, 32
    s_cbranch_scc1 END
    v_mov_b32 v2, s96
    v_mov_b32 v3, s97
    buffer_store_dwordx2 v[2:3], v1, s[84:87], s88 offen offset:{n*8}
        """)
    FGL = """s_mov_b32 s46, 1024
    s_mov_b32 s47, 0x00020000"""
    if not EG:
        FGL += """
    s_mov_b32 s44, s24            ; gate_w
    s_mov_b32 s45, s25
    v_lshlrev_b32 v12, 4, v1      ; l*16
    buffer_load_dwordx4 v[64:67], v12, s[60:63], 0 offen
    buffer_load_dwordx4 v[68:71], v12, s[44:47], 0 offen"""
    a(f"""
    s_branch END
FINAL:
    {FGL}
    v_lshrrev_b32 v13, 3, v1
    v_lshlrev_b32 v13, 10, v13
    v_and_b32 v14, 7, v1
    v_lshlrev_b32 v14, 4, v14
    v_add_u32 v13, v13, v14
    s_lshr_b32 s98, s2, 3
    s_lshl_b32 s98, s98, 16
    s_and_b32 s99, s2, 7
    s_lshl_b32 s99, s99, 7
    s_add_u32 s98, s98, s99
    s_add_u32 s80, s98, {FREC}
    """)
    for j in range(1, 8): a(f"s_add_u32 s{80+j}, s80, {j*8192}")
    def recloads(b=96):
        for j in range(8):
            a(f"buffer_load_dwordx4 v[{b+4*j}:{b+3+4*j}], v13, s[56:59], s{80+j} offen sc1")
    recloads()
    if not EG: a("s_waitcnt vmcnt(8)")
    GV = 8
    if not EG:
        gatecalc(64, 68, 72)
        a("v_mov_b32 v10, v72\nv_mov_b32 v11, v73")
    else:
        a("v_mov_b32 v10, s90\nv_mov_b32 v11, s91")
    a(f"""
    s_mov_b32 s96, 0
    s_mov_b32 s97, -1
    v_cndmask_b32 v8, v10, v11, s[96:97]
    v_and_b32 v14, 7, v1
    v_lshlrev_b32 v14, 2, v14
    v_lshrrev_b32 v15, 4, v1
    v_and_b32 v15, 1, v15
    v_lshlrev_b32 v15, 1, v15
    v_add_u32 v14, v14, v15
    s_lshl_b32 s98, s2, 5
    s_mov_b32 s44, s26
    s_mov_b32 s45, s27
    s_mov_b32 s99, {SPIN}
    """)
    def fcheck(b):
        for j in range(8):
            a(f"v_cmpx_eq_u32 vcc, s66, v{b+1+4*j}")
            a(f"v_cmpx_eq_u32 vcc, s66, v{b+3+4*j}")
        a("s_not_b64 exec, exec")
    def fadd(b):
        a("s_mov_b64 exec, -1")
        for k in range(4):
            a(f"v_add_f32 v{32+2*k}, v{b+8*k}, v{b+8*k+4}")
            a(f"v_add_f32 v{33+2*k}, v{b+8*k+2}, v{b+8*k+6}")
    if FPIPE:
        if FSLEEP: a(f"s_sleep {FSLEEP}")
        recloads(64)
        a("FCHK:\ns_waitcnt vmcnt(8)")
        fcheck(96)
        a("s_cbranch_scc0 FOK")
        recloads(96)
        a("s_mov_b64 exec, -1\ns_waitcnt vmcnt(8)")
        fcheck(64)
        a("s_cbranch_scc0 FOKB")
        recloads(64)
        a("s_mov_b64 exec, -1\ns_sub_u32 s99, s99, 1\ns_cbranch_scc0 FCHK\ns_branch FOK\nFOKB:")
        fadd(64)
        a("s_branch FCOM\nFOK:")
        fadd(96)
        a("FCOM:")
    else:
        a("s_waitcnt vmcnt(0)\nFCHK:")
        fcheck(96)
        a("s_cbranch_scc0 FOK\ns_sub_u32 s99, s99, 1\ns_cbranch_scc1 FOK")
        recloads(96)
        a("s_mov_b64 exec, -1\ns_waitcnt vmcnt(0)\ns_branch FCHK\nFOK:")
        fadd(96)
    a(f"""
    v_add_f32 v48, v32, v34      ; A0
    v_add_f32 v50, v36, v38      ; B0
    v_add_f32 v49, v33, v35      ; A1
    v_add_f32 v51, v37, v39      ; B1
    v_permlane32_swap_b32 v48, v50
    v_permlane32_swap_b32 v49, v51
    v_add_f32 v48, v48, v50
    v_add_f32 v49, v49, v51
    v_permlane16_swap_b32 v48, v49
    v_add_f32 v48, v48, v49
    v_add_f32_dpp v48, v48, v48 row_ror:8 row_mask:0xf bank_mask:0xf
    v_cvt_pk_bf16_f32 v48, v48, v48
    v_lshlrev_b32 v48, 16, v48
    v_mul_f32 v48, v48, v8
    v_cvt_pk_bf16_f32 v48, v48, v48
    v_lshlrev_b32 v48, 16, v48
    v_mov_b32 v49, v48
    v_permlane32_swap_b32 v48, v49
    v_add_f32 v48, v48, v49
    v_cvt_pk_bf16_f32 v48, v48, v48
    s_mov_b32 exec_lo, 0x00ff00ff
    s_mov_b32 exec_hi, 0
    buffer_store_short v48, v14, s[44:47], s98 offen
    s_cmp_lg_u32 s2, 0
    s_cbranch_scc1 NOEPOCH
    s_add_u32 s64, s64, 1
    v_mov_b32 v2, s64
    v_mov_b32 v3, 0
    s_mov_b64 exec, 1
    buffer_store_dword v2, v3, s[56:59], 0 offen
NOEPOCH:
    """)
    if ts == 2:
        a(f"""
    s_waitcnt vmcnt(0)
    s_memrealtime s[96:97]
    s_waitcnt lgkmcnt(0)
    s_mov_b32 s84, s28
    s_mov_b32 s85, s29
    s_mov_b32 s86, 256
    s_mov_b32 s87, 0x00020000
    v_mov_b32 v1, 0
    s_mov_b64 exec, 1
    v_mov_b32 v2, s96
    buffer_atomic_umax v2, v1, s[84:87], 0 offen offset:{15*4}
        """)
    if ts in (1,3):
        a(f"""
    s_waitcnt vmcnt(0)
    s_memrealtime s[96:97]
    s_waitcnt lgkmcnt(0)
    s_add_u32 s84, s30, {TSOFF}
    s_addc_u32 s85, s31, 0
    s_mov_b32 s86, 0x100000
    s_mov_b32 s87, 0x00020000
    s_lshl_b32 s88, s2, 9
    v_mov_b32 v1, 0
    s_mov_b64 exec, 1
    v_mov_b32 v2, s96
    v_mov_b32 v3, s97
    buffer_store_dwordx2 v[2:3], v1, s[84:87], s88 offen offset:{(nst+2)*8}
        """)
    a("END:")
    open(name, "w").write(a.text(256, 512, LDS_BYTES, 128))
    mk.build(name)
    return a

if __name__ == "__main__":
    kw = {}
    name = sys.argv[1]
    for x in sys.argv[2:]:
        k, v = x.split("=")
        kw[k] = int(v) if v.lstrip("-").isdigit() else v
    a = gen(name, **kw)
    print("nops inserted:", a.nops, "lines:", len(a.lines))
```

```python
import sys
from asmlib import *
import mk

QFLAG = 0x8000
OFLAG = 0x50000
OSTAT = 0x4000
QREC  = 0x10000
FREC  = 0x80000
OREC  = 0x100000
TSOFF = 64 << 20
L_QP = 0
L_QB = 4096
L_MX = 5120
L_LS = 5248
L_OP = 8192
LDS_BYTES = 24576
SPIN = 100000

def gen(name, ts=False, NK1=8, NV1=4, WOPOS="afterQ", hint1=True, hint2=True, BAR0=1, BAR1=1, BARP=1, PF=0, TLBW=0, EG=0, FPIPE=0, HTH=0, FSLEEP=4, PACE=0, PW=3, WO1=2, WSPL=4, KDEL=-1, VSPL=8, RED=0, HELP=""):
    a = Asm()
    stampn = [0]
    def stamp():
        if not ts: return
        k = stampn[0]; stampn[0] += 1
        assert k < 10
        a(f"s_memrealtime s[{4+2*k}:{5+2*k}]")
    a(f"""
    s_cmp_ge_u32 s2, 256
    s_cbranch_scc1 END
    """)
    if ts: a("s_memrealtime s[100:101]")
    PFCODE = ""
    HELP0 = ""
    if HELP:
        pairs = [tuple(int(v) for v in p.split(":")) for p in HELP.split(",")]
        PT = 0; Lm = 0
        tab = [15]*8
        for l, h in pairs:
            tab[h] = l; Lm |= 1 << l
        for x in range(8): PT |= tab[x] << (4*x)
        HELP0 = f"""s_lshl_b32 s93, s32, 2
    s_mov_b32 s95, 0x{PT:08x}
    s_lshr_b32 s95, s95, s93
    s_and_b32 s95, s95, 15
    s_cmp_lg_u32 s95, 15
    s_cselect_b32 s93, 2, 1
    s_mov_b32 s80, {Lm}
    s_bitcmp1_b32 s80, s32
    s_cselect_b32 s93, 0, s93
    s_bitcmp1_b32 s36, 1
    s_cselect_b32 s93, s93, 1
    s_lshr_b32 s80, s33, 4
    s_lshl_b32 s95, s95, 1
    s_add_u32 s95, s95, s80
    s_and_b32 s81, s95, 7
    s_sub_u32 s81, s81, s38
    s_lshl_b32 s81, s81, 10
    s_add_u32 s80, s68, s81
    s_add_u32 s81, s80, 8192
    s_add_u32 s82, s80, 16384
    s_add_u32 s83, s80, 24576"""
    if RED == 0:
        REDCODE = "s_mov_b32 s34, s2"
    else:
        REDCODE = """s_sub_u32 s34, s32, 1
    s_cmp_eq_u32 s32, 4
    s_cselect_b32 s34, 31, s34
    s_cmp_eq_u32 s32, 7
    s_cselect_b32 s34, 3, s34
    s_min_u32 s34, s34, 31
    s_lshl_b32 s34, s34, 3
    s_add_u32 s34, s34, s33
    s_cmp_lt_u32 s33, 8
    s_cselect_b32 s34, s34, 255"""
    if PF:
        PFCODE = """s_getpc_b64 s[90:91]
PFBASE:
    v_lshlrev_b32 v120, 4, v0
    v_min_u32 v120, END-PFBASE, v120
    global_load_dword v121, v120, s[90:91]"""
    a(f"""
    s_load_dwordx16 s[4:19], s[0:1], 0
    s_load_dwordx8 s[20:27], s[0:1], 64
    s_load_dwordx4 s[28:31], s[0:1], 96
    {PFCODE}
    s_and_b32 s32, s2, 7          ; xcd
    s_lshr_b32 s33, s2, 3         ; slot
    s_lshr_b32 s34, s33, 4
    s_lshl_b32 s35, s32, 1
    s_add_u32 s35, s35, s34       ; grp
    {REDCODE}
    s_and_b32 s36, s33, 15        ; i
    s_lshr_b32 s37, s35, 3        ; branch
    s_and_b32 s38, s35, 7         ; kvh
    v_lshrrev_b32 v10, 6, v0      ; wave
    v_and_b32 v1, 63, v0          ; lane
    v_readfirstlane_b32 s39, v10  ; w
    v_lshrrev_b32 v2, 4, v1       ; g
    v_and_b32 v3, 15, v1          ; c
    v_lshlrev_b32 v11, 4, v3      ; c*16
    v_lshlrev_b32 v4, 15, v2
    v_add_u32 v4, v4, v11
    v_lshlrev_b32 v7, 12, v2
    v_add_u32 v7, v7, v11
    v_lshrrev_b32 v5, 2, v3
    v_lshlrev_b32 v5, 8, v5       ; row*256
    v_lshlrev_b32 v10, 6, v2      ; g*64
    v_add_u32 v5, v5, v10
    v_and_b32 v10, 3, v1
    v_lshlrev_b32 v10, 4, v10
    v_add_u32 v5, v5, v10         ; K voffset
    v_lshlrev_b32 v6, 4, v1       ; V voffset = l*16
    v_lshlrev_b32 v10, 3, v2      ; x voffset = g*8
    s_and_b32 s96, s36, 3
    s_lshr_b32 s97, s36, 2        ; hh
    s_lshl_b32 s98, s38, 2
    s_add_u32 s98, s98, s97
    s_lshl_b32 s68, s96, 20
    s_lshl_b32 s99, s39, 17
    s_add_u32 s68, s68, s99
    s_lshl_b32 s99, s98, 8
    s_add_u32 s68, s68, s99
    s_add_u32 s69, s68, 8192
    s_add_u32 s70, s68, 16384
    s_add_u32 s71, s68, 24576
    s_lshl_b32 s75, s96, 8
    s_lshl_b32 s99, s39, 5
    s_add_u32 s75, s75, s99
    s_lshl_b32 s72, s38, 23
    s_add_u32 s72, s72, {28672*256}
    s_lshl_b32 s99, s36, 16
    s_add_u32 s72, s72, s99
    s_lshl_b32 s99, s39, 13
    s_add_u32 s72, s72, s99       ; K/V soffset
    s_add_u32 s73, s72, 4096
    s_lshl_b32 s74, s98, 17
    s_lshl_b32 s99, s39, 14
    s_add_u32 s74, s74, s99
    s_lshl_b32 s99, s96, 8
    s_add_u32 s74, s74, s99
    {HELP0}
    s_cmp_eq_u32 s37, 0
    s_mov_b32 s50, 0x400000
    s_mov_b32 s51, 0x00020000
    s_mov_b32 s62, 1024
    s_mov_b32 s63, 0x00020000
    s_mov_b32 s42, 0x4000000
    s_mov_b32 s43, 0x00020000
    s_waitcnt lgkmcnt(0)
    s_cselect_b32 s48, s10, s20   ; wq
    s_cselect_b32 s49, s11, s21
    s_mov_b32 s60, s4             ; x
    s_mov_b32 s61, s5
    """)
    if HELP:
        a("s_cselect_b32 s92, 1, 0\ns_cmp_eq_u32 s93, 0\ns_cbranch_scc1 NOH1")
    a("buffer_load_dwordx2 v[8:9], v10, s[60:63], s75 offen")
    for j in range(4):
        a(f"buffer_load_dwordx4 v[{48+4*j}:{51+4*j}], v4, s[48:51], s{68+j} offen nt")
    if HELP:
        a("""
    s_cmp_lg_u32 s93, 2
    s_cbranch_scc1 NOH1
    s_cmp_lt_u32 s95, 8
    s_cselect_b32 s88, s10, s20
    s_cselect_b32 s89, s11, s21
    s_mov_b32 s90, 0x400000
    s_mov_b32 s91, 0x00020000
        """)
        for j in range(4):
            a(f"buffer_load_dwordx4 v[{112+4*j}:{115+4*j}], v4, s[88:91], s{80+j} offen nt")
        a("NOH1:\ns_cmp_eq_u32 s92, 1")
    a(f"""
    s_cselect_b32 s40, s6, s16    ; K
    s_cselect_b32 s41, s7, s17
    """)
    if EG:
        a(f"""
    s_mov_b32 s84, s24            ; gate_w
    s_mov_b32 s85, s25
    s_mov_b32 s86, 1024
    s_mov_b32 s87, 0x00020000
    s_cselect_b32 s92, 1, 0
    s_cmp_eq_u32 s39, 1
    s_cselect_b32 s94, 1, 0
    s_cmp_lt_u32 s34, 32
    s_cselect_b32 s94, s94, 0
    s_cmp_eq_u32 s94, 0
    s_cbranch_scc1 SKIPG
    buffer_load_dwordx4 v[96:99], v6, s[60:63], 0 offen
    buffer_load_dwordx4 v[100:103], v6, s[84:87], 0 offen
SKIPG:
    s_cmp_eq_u32 s92, 1
        """)
    if PACE: NK1 = 0; NV1 = 0; BAR0 = 0; BAR1 = 0; BARP = 0; WOPOS = "pace"
    if BAR0: a("s_barrier")
    def ldK(j):
        a(f"buffer_load_dwordx4 v[{64+4*j}:{67+4*j}], v5, s[40:43], s{72 + (j>>2)} offen offset:{(j&3)*1024} nt")
    def ldV(j):
        a(f"buffer_load_dwordx4 v[{96+4*j}:{99+4*j}], v6, s[44:47], s{72 + (j>>2)} offen offset:{(j&3)*1024} nt")
    def ldWO():
        for j in range(4):
            a(f"buffer_load_dwordx4 v[{48+4*j}:{51+4*j}], v7, s[52:55], s74 offen offset:{j*1024} nt")
    if KDEL < 0:
        for j in range(NK1): ldK(j)
    TLBCODE = ""
    if TLBW:
        TLBCODE = """s_load_dword s92, s[44:45], s72
    s_load_dword s93, s[52:53], s74"""
    a(f"""
    s_load_dword s64, s[30:31], 0     ; epoch
    s_cselect_b32 s44, s8, s18    ; V
    s_cselect_b32 s45, s9, s19
    s_mov_b32 s46, 0x4000000
    s_mov_b32 s47, 0x00020000
    s_cselect_b32 s52, s12, s22   ; wo
    s_cselect_b32 s53, s13, s23
    s_mov_b32 s54, 0x400000
    s_mov_b32 s55, 0x00020000
    s_mov_b32 s56, s30            ; ws
    s_mov_b32 s57, s31
    s_mov_b32 s58, 0x400000
    s_mov_b32 s59, 0x00020000
    {TLBCODE}
    s_mov_b32 s76, 0x05040100
    s_mov_b32 s77, 0x07060302
    v_lshlrev_b32 v11, 5, v3
    v_lshlrev_b32 v12, 4, v2
    v_add_u32 v11, v11, v12
    s_lshl_b32 s99, s39, 9
    v_add_u32 v11, s99, v11       ; v11 = w*512 + c*32 + g*16
    """)
    stamp()
    if HELP:
        a("s_cmp_eq_u32 s93, 0\ns_cbranch_scc1 QSKIP")
    a(f"s_waitcnt vmcnt({4+(NK1 if KDEL < 0 else 0)})")
    a("s_mov_b32 s96, 0x00010001\ns_mov_b32 s97, 0x00010001")
    for e in range(8):
        a(f"v_cndmask_b32 v{32+2*e}, 0, v8, s[96:97]")
        a(f"v_cndmask_b32 v{33+2*e}, 0, v9, s[96:97]")
        if e < 7: a("s_lshl_b64 s[96:97], s[96:97], 1")
    def wmm(acc):
        for e in range(8):
            pr = e >> 1; sel = "s76" if (e & 1) == 0 else "s77"
            a(f"v_perm_b32 v{16+2*e}, v{52+pr}, v{48+pr}, {sel}")
            a(f"v_perm_b32 v{17+2*e}, v{60+pr}, v{56+pr}, {sel}")
    def wmfma(acc):
        for e in range(8):
            c = "0" if e == 0 else f"v[{acc}:{acc+3}]"
            a(f"v_mfma_f32_16x16x16_bf16 v[{acc}:{acc+3}], v[{32+2*e}:{33+2*e}], v[{16+2*e}:{17+2*e}], {c}")
    def gatecalc(X, G, T):
        for k in range(4):
            a(f"v_lshlrev_b32 v{T+2*k}, 16, v{X+k}")
            a(f"v_and_b32 v{T+1+2*k}, 0xffff0000, v{X+k}")
            a(f"v_lshlrev_b32 v{T+8+2*k}, 16, v{G+k}")
            a(f"v_and_b32 v{T+9+2*k}, 0xffff0000, v{G+k}")
        for k in range(8): a(f"v_mul_f32 v{T+k}, v{T+k}, v{T+8+k}")
        for k in range(4): a(f"v_cvt_pk_bf16_f32 v{T+8+k}, v{T+2*k}, v{T+1+2*k}")
        for k in range(4):
            a(f"v_lshlrev_b32 v{T+2*k}, 16, v{T+8+k}")
            a(f"v_and_b32 v{T+1+2*k}, 0xffff0000, v{T+8+k}")
        a(f"""
    v_add_f32 v{T}, v{T}, v{T+1}
    v_add_f32 v{T+2}, v{T+2}, v{T+3}
    v_add_f32 v{T+4}, v{T+4}, v{T+5}
    v_add_f32 v{T+6}, v{T+6}, v{T+7}
    v_add_f32 v{T}, v{T}, v{T+2}
    v_add_f32 v{T+4}, v{T+4}, v{T+6}
    v_add_f32 v{T}, v{T}, v{T+4}
    v_add_f32_dpp v{T}, v{T}, v{T} row_ror:8 row_mask:0xf bank_mask:0xf
    v_add_f32_dpp v{T}, v{T}, v{T} row_ror:4 row_mask:0xf bank_mask:0xf
    v_add_f32_dpp v{T}, v{T}, v{T} row_ror:2 row_mask:0xf bank_mask:0xf
    v_add_f32_dpp v{T}, v{T}, v{T} row_ror:1 row_mask:0xf bank_mask:0xf
    v_mov_b32 v{T+1}, v{T}
    v_permlane16_swap_b32 v{T}, v{T+1}
    v_add_f32 v{T}, v{T}, v{T+1}
    v_mov_b32 v{T+1}, v{T}
    v_permlane32_swap_b32 v{T}, v{T+1}
    v_add_f32 v{T}, v{T}, v{T+1}
    v_cvt_pk_bf16_f32 v{T}, v{T}, v{T}
    v_lshlrev_b32 v{T}, 16, v{T}          ; bf16(sum)
    v_mul_f32 v{T}, 0xBFB8AA3B, v{T}      ; -log2e * s
    v_exp_f32 v{T}, v{T}
    v_add_f32 v{T}, 1.0, v{T}
    v_rcp_f32 v{T}, v{T}
    v_cvt_pk_bf16_f32 v{T}, v{T}, v{T}
    v_lshlrev_b32 v{T}, 16, v{T}          ; g (bf16)
    v_sub_f32 v{T+1}, 1.0, v{T}
    v_cvt_pk_bf16_f32 v{T+1}, v{T+1}, v{T+1}
    v_lshlrev_b32 v{T+1}, 16, v{T+1}          ; 1-g (bf16)
        """)
    if PACE:
        for j in range(PW):
            a(f"s_waitcnt vmcnt(3)")
            ldK(j)
        if PW == 3: a("s_waitcnt vmcnt(3)")
        elif PW == 4: a("s_waitcnt vmcnt(4)")
        else: a(f"s_waitcnt vmcnt({PW})")
    else:
        if KDEL >= 0:
            a(f"s_waitcnt vmcnt({3-KDEL})")
            for j in range(NK1): ldK(j)
        a(f"s_waitcnt vmcnt({NK1})")
    stamp()
    wmm(12)
    wmfma(12)
    if HELP:
        a("s_cmp_lg_u32 s93, 2\ns_cbranch_scc1 NOH2")
        for e in range(8):
            pr = e >> 1; sel = "s76" if (e & 1) == 0 else "s77"
            a(f"v_perm_b32 v{48+2*e}, v{116+pr}, v{112+pr}, {sel}")
            a(f"v_perm_b32 v{49+2*e}, v{124+pr}, v{120+pr}, {sel}")
        for e in range(8):
            c = "0" if e == 0 else "v[116:119]"
            a(f"v_mfma_f32_16x16x16_bf16 v[116:119], v[{32+2*e}:{33+2*e}], v[{48+2*e}:{49+2*e}], {c}")
        a(f"""
    s_nop 7
    s_nop 7
    s_mov_b32 exec_hi, 0
    ds_write_b128 v11, v[116:119] offset:{L_OP}
    s_mov_b32 exec_hi, -1
NOH2:
    s_nop 7
        """)
    a(f"""
    s_waitcnt lgkmcnt(0)
    s_mul_i32 s66, s64, 0x9E3779B1
    s_add_u32 s66, s66, 0x3C6EF372   ; T
    s_mov_b32 s67, s66
    s_mov_b32 exec_hi, 0
    ds_write_b128 v11, v[12:15] offset:{L_QP}
    s_mov_b32 exec_hi, -1
    v_and_b32 v12, 7, v1
    v_lshlrev_b32 v13, 3, v12
    s_lshl_b32 s99, s39, 6
    v_add_u32 v13, s99, v13       ; w*64 + p*8
    v_lshlrev_b32 v12, 4, v12
    s_lshl_b32 s99, s39, 7
    v_add_u32 v12, s99, v12
    s_lshl_b32 s98, s35, 4
    s_add_u32 s98, s98, s36
    s_lshl_b32 s78, s98, 10
    s_add_u32 s78, s78, {QREC}
    v_mov_b32 v21, s66
    v_mov_b32 v23, s66
    s_waitcnt lgkmcnt(0)
    s_barrier
    """)
    for wp in range(8):
        a(f"ds_read_b64 v[{24+2*(wp&3)}:{25+2*(wp&3)}], v13 offset:{L_QP+wp*512}" if wp < 4 else
          f"ds_read_b64 v[{32+2*(wp&3)}:{33+2*(wp&3)}], v13 offset:{L_QP+wp*512}")
    a(f"""
    s_waitcnt lgkmcnt(4)
    v_pk_add_f32 v[24:25], v[24:25], v[26:27]
    v_pk_add_f32 v[28:29], v[28:29], v[30:31]
    s_waitcnt lgkmcnt(0)
    v_pk_add_f32 v[32:33], v[32:33], v[34:35]
    v_pk_add_f32 v[36:37], v[36:37], v[38:39]
    v_pk_add_f32 v[24:25], v[24:25], v[28:29]
    v_pk_add_f32 v[32:33], v[32:33], v[36:37]
    v_add_f32 v20, v24, v32
    v_add_f32 v22, v25, v33
    v_mov_b32 v14, v12
    s_mov_b64 exec, 0xff
    buffer_store_dwordx4 v[20:23], v12, s[56:59], s78 offen sc1
    s_cmp_lg_u32 s39, 0
    s_cbranch_scc1 NOQFLAG
    s_lshl_b32 s99, s35, 11
    s_add_u32 s99, s99, {QFLAG}
    s_mov_b64 exec, 0xffff
    v_lshlrev_b32 v12, 7, v1
    s_lshl_b32 s98, s36, 2
    s_add_u32 s99, s99, s98
    buffer_store_dword v21, v12, s[56:59], s99 offen sc1
NOQFLAG:
    s_mov_b64 exec, -1
    """)
    if HELP:
        a("s_cmp_lg_u32 s93, 2\ns_cbranch_scc1 QDONE")
        for wp in range(8):
            a(f"ds_read_b64 v[{24+2*wp}:{25+2*wp}], v13 offset:{L_OP+wp*512}")
        a(f"""
    s_lshl_b32 s98, s95, 4
    s_add_u32 s98, s98, s36
    s_lshl_b32 s78, s98, 10
    s_add_u32 s78, s78, {QREC}
    v_mov_b32 v41, s66
    v_mov_b32 v43, s66
    s_waitcnt lgkmcnt(4)
    v_pk_add_f32 v[24:25], v[24:25], v[26:27]
    v_pk_add_f32 v[28:29], v[28:29], v[30:31]
    s_waitcnt lgkmcnt(0)
    v_pk_add_f32 v[32:33], v[32:33], v[34:35]
    v_pk_add_f32 v[36:37], v[36:37], v[38:39]
    v_pk_add_f32 v[24:25], v[24:25], v[28:29]
    v_pk_add_f32 v[32:33], v[32:33], v[36:37]
    v_add_f32 v40, v24, v32
    v_add_f32 v42, v25, v33
    s_mov_b64 exec, 0xff
    buffer_store_dwordx4 v[40:43], v14, s[56:59], s78 offen sc1
    s_cmp_lg_u32 s39, 0
    s_cbranch_scc1 NOQFLAG2
    s_lshl_b32 s99, s95, 11
    s_add_u32 s99, s99, {QFLAG}
    s_mov_b64 exec, 0xffff
    v_lshlrev_b32 v14, 7, v1
    s_lshl_b32 s98, s36, 2
    s_add_u32 s99, s99, s98
    buffer_store_dword v41, v14, s[56:59], s99 offen sc1
NOQFLAG2:
    s_mov_b64 exec, -1
    s_branch QDONE
QSKIP:
    s_waitcnt vmcnt(8) lgkmcnt(0)
    s_mul_i32 s66, s64, 0x9E3779B1
    s_add_u32 s66, s66, 0x3C6EF372   ; T
    s_mov_b32 s67, s66
QDONE:
        """)
    stamp()
    if BARP: a("s_barrier")
    nafter = 0
    if PACE:
        KA = min(8, 2*PW)
        for j in range(PW, KA):
            a(f"s_waitcnt vmcnt({PW-1})")
            ldK(j)
    else:
        for j in range(NK1, 8): ldK(j)
    for j in range(NV1): ldV(j)
    if EG:
        a("s_cmp_eq_u32 s94, 0\ns_cbranch_scc1 SKIPG2")
        gatecalc(96, 100, 104)
        a("v_readfirstlane_b32 s90, v104\nv_readfirstlane_b32 s91, v105\nSKIPG2:")
    def hintpoll(lbl, offreg, th=0):
        a(f"""
    s_cmp_lg_u32 s39, 0
    s_cbranch_scc1 {lbl}_B
    s_mov_b32 s99, {SPIN}
{lbl}:
    s_load_dwordx16 s[80:95], s[30:31], {offreg} glc
    s_sub_u32 s99, s99, 1
    s_cbranch_scc1 {lbl}_X
    s_waitcnt lgkmcnt(0)
        """)
        if th:
            a("s_mov_b32 s98, 0")
            for k in range(8):
                a(f"s_cmp_eq_u64 s[{80+2*k}:{81+2*k}], s[66:67]")
                a("s_addc_u32 s98, s98, 0")
            a(f"s_cmp_lt_u32 s98, {th}")
        else:
            for k in range(8):
                a(f"s_xor_b64 s[{80+2*k}:{81+2*k}], s[{80+2*k}:{81+2*k}], s[66:67]")
            for k in range(1, 8):
                a(f"s_or_b64 s[80:81], s[80:81], s[{80+2*k}:{81+2*k}]")
        a(f"""
    s_cbranch_scc1 {lbl}
{lbl}_X:
    s_waitcnt lgkmcnt(0)
{lbl}_B:
    s_barrier
        """)
    a(f"""
    s_lshl_b32 s79, s35, 4
    s_add_u32 s79, s79, s36
    s_lshl_b32 s79, s79, 7
    s_add_u32 s79, s79, {QFLAG}
    v_lshrrev_b32 v12, 5, v1
    v_and_b32 v13, 31, v1
    v_lshlrev_b32 v14, 10, v12
    v_lshlrev_b32 v15, 4, v13
    v_add_u32 v14, v14, v15       ; v14 = Q voffset
    s_lshr_b32 s98, s39, 1        ; hq
    s_and_b32 s97, s39, 1         ; hf
    s_lshl_b32 s78, s35, 14
    s_lshl_b32 s99, s98, 12
    s_add_u32 s78, s78, s99
    s_lshl_b32 s99, s97, 9
    s_add_u32 s78, s78, s99
    s_add_u32 s78, s78, {QREC}
    v_lshlrev_b32 v15, 2, v13
    v_lshlrev_b32 v12, 1, v12
    v_add_u32 v15, v15, v12
    s_lshl_b32 s99, s98, 8
    s_lshl_b32 s97, s97, 7
    s_add_u32 s99, s99, s97
    v_add_u32 v15, s99, v15
    """)
    if hint1: hintpoll("QH", "s79")
    stamp()
    a(f"""
    buffer_load_dwordx4 v[16:19], v14, s[56:59], s78 offen sc1
    buffer_load_dwordx4 v[20:23], v14, s[56:59], s78 offen offset:2048 sc1
    """)
    if BAR1: a("s_barrier")
    if PACE:
        rest = [("K", j) for j in range(KA, 8)] + [("V", j) for j in range(8)]
        def ld(t):
            (ldK if t[0] == "K" else ldV)(t[1])
        n1 = PW
        for k in range(n1):
            a(f"s_waitcnt vmcnt({PW-1+2})")
            ld(rest.pop(0))
        nafter = n1
    else:
        for j in range(NV1, 8): ldV(j)
        nafter = 8 - NV1
    if WOPOS == "withV":
        ldWO(); nafter += 4
    a(f"""
    v_lshrrev_b32 v12, 2, v3
    v_lshlrev_b32 v12, 8, v12
    v_lshlrev_b32 v13, 6, v2
    v_add_u32 v12, v12, v13
    v_and_b32 v13, 3, v1
    v_lshlrev_b32 v13, 4, v13
    v_add_u32 v12, v12, v13
    s_mov_b32 s99, {SPIN}
    s_waitcnt vmcnt({nafter})
QCHK:
    v_cmpx_eq_u32 vcc, s66, v17
    v_cmpx_eq_u32 vcc, s66, v19
    v_cmpx_eq_u32 vcc, s66, v21
    v_cmpx_eq_u32 vcc, s66, v23
    s_cmp_eq_u64 exec, -1
    s_mov_b64 exec, -1
    s_cbranch_scc1 QOK
    s_sub_u32 s99, s99, 1
    s_cbranch_scc1 QOK
    buffer_load_dwordx4 v[16:19], v14, s[56:59], s78 offen sc1
    buffer_load_dwordx4 v[20:23], v14, s[56:59], s78 offen offset:2048 sc1
    s_waitcnt vmcnt(0)
    s_branch QCHK
QOK:
    v_add_f32 v16, v16, v20
    v_add_f32 v18, v18, v22
    v_permlane32_swap_b32 v16, v18
    v_add_f32 v16, v16, v18
    v_cvt_pk_bf16_f32 v16, v16, v16
    ds_write_b16 v15, v16 offset:{L_QB}
    """)
    stamp()
    if WOPOS == "afterQ":
        ldWO()
    a(f"""
    s_waitcnt lgkmcnt(0)
    s_barrier
    ds_read_b128 v[8:11], v12 offset:{L_QB}
    """)
    if PACE:
        issued = [("K", j) for j in range(KA)] + ["Q", "Q"] + ([("K", j) for j in range(KA, 8)] + [("V", j) for j in range(8)])[:n1]
        while True:
            infl = issued[-PW:]
            if all(t[0] == "V" for t in infl): break
            a(f"s_waitcnt vmcnt({PW-1})")
            t = rest.pop(0); ld(t); issued.append(t)
        k7 = issued.index(("K", 7))
        a(f"s_waitcnt vmcnt({len(issued)-1-k7})")
    a(f"""
    v_lshrrev_b32 v13, 2, v3
    v_lshlrev_b32 v13, 5, v13
    s_lshl_b32 s99, s39, 2
    v_add_u32 v14, s99, v13       ; h*32 + w*4
    s_waitcnt lgkmcnt(0)
    """)
    def Dj(j): return 16 + 4*j if j < 4 else 64 + 4*(j-4)
    for j in range(8):
        a(f"v_mfma_f32_16x16x32_bf16 v[{Dj(j)}:{Dj(j)+3}], v[{64+4*j}:{67+4*j}], v[8:11], 0")
    if PACE and rest: t = rest.pop(0); ld(t); issued.append(t)
    for half in range(2):
        js = range(4*half, 4*half+4)
        for j in js: a(f"v_mov_b32_dpp v{32+j}, v{Dj(j)} quad_perm:[0,0,0,0] row_mask:0xf bank_mask:0xf")
        for b in range(1, 4):
            for j in js: a(f"v_add_f32_dpp v{32+j}, v{Dj(j)+b}, v{32+j} quad_perm:[{b},{b},{b},{b}] row_mask:0xf bank_mask:0xf")
    a("s_mov_b32 s98, 0x3DB504F3")
    for u in range(4): a(f"v_cvt_pk_bf16_f32 v{40+u}, v{32+2*u}, v{33+2*u}")
    for u in range(4):
        a(f"v_lshlrev_b32 v{32+2*u}, 16, v{40+u}")
        a(f"v_and_b32 v{33+2*u}, 0xffff0000, v{40+u}")
    for j in range(8): a(f"v_mul_f32 v{32+j}, s98, v{32+j}")
    for u in range(4): a(f"v_cvt_pk_bf16_f32 v{40+u}, v{32+2*u}, v{33+2*u}")
    for u in range(4):
        a(f"v_lshlrev_b32 v{32+2*u}, 16, v{40+u}")
        a(f"v_and_b32 v{33+2*u}, 0xffff0000, v{40+u}")
    a(f"""
    v_max3_f32 v40, v32, v33, v34
    v_max3_f32 v41, v35, v36, v37
    v_max3_f32 v40, v40, v38, v39
    v_max_f32 v40, v40, v41
    v_mov_b32 v41, v40
    v_permlane32_swap_b32 v40, v41
    v_max_f32 v40, v40, v41
    v_mov_b32 v41, v40
    v_permlane16_swap_b32 v40, v41
    v_max_f32 v40, v40, v41
    s_mov_b64 exec, 0x1111
    ds_write_b32 v14, v40 offset:{L_MX}
    s_mov_b64 exec, -1
    s_waitcnt lgkmcnt(0)
    s_barrier
    ds_read_b128 v[40:43], v13 offset:{L_MX}
    ds_read_b128 v[44:47], v13 offset:{L_MX+16}
    s_mov_b32 s98, 0x3FB8AA3B     ; log2(e)
    s_waitcnt lgkmcnt(0)
    v_max3_f32 v40, v40, v41, v42
    v_max3_f32 v44, v44, v45, v46
    v_max3_f32 v40, v40, v43, v47
    v_max_f32 v10, v40, v44
    """)
    if PACE and rest: t = rest.pop(0); ld(t); issued.append(t)
    for j in range(8): a(f"v_sub_f32 v{32+j}, v{32+j}, v10")
    for j in range(8): a(f"v_mul_f32 v{32+j}, s98, v{32+j}")
    for j in range(8): a(f"v_exp_f32 v{32+j}, v{32+j}")
    a(f"""
    v_add_f32 v40, v32, v33
    v_add_f32 v41, v34, v35
    v_add_f32 v42, v36, v37
    v_add_f32 v43, v38, v39
    v_add_f32 v40, v40, v41
    v_add_f32 v42, v42, v43
    v_add_f32 v40, v40, v42
    v_cvt_pk_bf16_f32 v24, v32, v33
    v_cvt_pk_bf16_f32 v25, v34, v35
    v_cvt_pk_bf16_f32 v26, v36, v37
    v_cvt_pk_bf16_f32 v27, v38, v39
    v_mov_b32 v41, v40
    v_permlane32_swap_b32 v40, v41
    v_add_f32 v40, v40, v41
    v_mov_b32 v41, v40
    v_permlane16_swap_b32 v40, v41
    v_add_f32 v40, v40, v41
    s_mov_b64 exec, 0x1111
    ds_write_b32 v14, v40 offset:{L_LS}
    s_mov_b64 exec, -1
    s_mov_b32 s96, 0x11111111
    s_mov_b32 s97, 0x11111111
    """)
    for v in range(4):
        for u in range(4):
            a(f"v_cndmask_b32 v{32+4*v+u}, 0, v{24+u}, s[96:97]")
        if v < 3: a("s_lshl_b64 s[96:97], s[96:97], 1")
    if PACE and rest: t = rest.pop(0); ld(t); issued.append(t)
    stamp()
    if WOPOS == "afterP": ldWO()
    a(f"""
    v_lshlrev_b32 v11, 9, v2
    v_lshlrev_b32 v12, 5, v3
    v_add_u32 v11, v11, v12
    s_lshl_b32 s99, s39, 11
    v_add_u32 v11, s99, v11
    v_and_b32 v12, 31, v1
    v_lshlrev_b32 v13, 3, v12
    s_lshl_b32 s99, s39, 8
    v_add_u32 v13, s99, v13
    v_lshlrev_b32 v12, 4, v12
    s_lshl_b32 s98, s35, 4
    s_add_u32 s98, s98, s36
    s_lshl_b32 s78, s98, 12
    s_lshl_b32 s99, s39, 9
    s_add_u32 s78, s78, s99
    s_add_u32 s78, s78, {OREC}
    s_lshr_b32 s98, s39, 1        ; h
    s_lshl_b32 s99, s98, 2
    v_readlane_b32 s65, v10, s99
    s_lshl_b32 s99, s98, 5
    v_mov_b32 v14, s99
    """)
    wo_after = 4 if WOPOS in ("afterQ", "withV", "afterP") else 0
    def pv(half):
        V0 = 96 + 16*half; B0 = 64 + 16*half
        for e in range(8):
            pr = e >> 1; sel = "s76" if (e & 1) == 0 else "s77"
            a(f"v_perm_b32 v{B0+2*e}, v{V0+4+pr}, v{V0+pr}, {sel}")
            a(f"v_perm_b32 v{B0+2*e+1}, v{V0+12+pr}, v{V0+8+pr}, {sel}")
        for e in [0, 4, 1, 5, 2, 6, 3, 7]:
            acc = 16 if e < 4 else 20
            v = e & 3
            c = "0" if (half == 0 and v == 0) else f"v[{acc}:{acc+3}]"
            a(f"v_mfma_f32_16x16x16_bf16 v[{acc}:{acc+3}], v[{32+4*v+2*half}:{33+4*v+2*half}], v[{B0+2*e}:{B0+2*e+1}], {c}")
    def ldWO1(j):
        a(f"buffer_load_dwordx4 v[{48+4*j}:{51+4*j}], v7, s[52:55], s74 offen offset:{j*1024} nt")
    if PACE:
        while rest:
            a(f"s_waitcnt vmcnt({PW-1})")
            t = rest.pop(0); ld(t); issued.append(t)
        def after(t): return len(issued) - 1 - issued.index(t)
        a(f"s_waitcnt vmcnt({after(('V', 3))})")
        pv(0)
        for j in range(WO1):
            a(f"s_waitcnt vmcnt({PW-1})")
            ldWO1(j); issued.append(("W", j))
        a(f"s_waitcnt vmcnt({after(('V', 7))})")
        stamp()
        pv(1)
    else:
        a(f"s_waitcnt vmcnt({4+wo_after})")
        pv(0)
        a(f"s_waitcnt vmcnt({wo_after})")
        stamp()
        if WOPOS == "afterV":
            for j in range(WSPL): ldWO1(j)
        pv(1)
    a(f"""
    ds_write_b128 v11, v[16:19] offset:{L_OP}
    ds_write_b128 v11, v[20:23] offset:{L_OP+16}
    v_mov_b32 v21, s66
    v_mov_b32 v23, s66
    s_waitcnt lgkmcnt(0)
    s_barrier
    """)
    for wp in range(8):
        a(f"ds_read_b64 v[{24+2*wp}:{25+2*wp}], v13 offset:{L_OP+wp*2048}")
    a(f"""
    ds_read_b128 v[40:43], v14 offset:{L_LS}
    ds_read_b128 v[44:47], v14 offset:{L_LS+16}
    s_waitcnt lgkmcnt(6)
    v_pk_add_f32 v[24:25], v[24:25], v[26:27]
    v_pk_add_f32 v[28:29], v[28:29], v[30:31]
    s_waitcnt lgkmcnt(2)
    v_pk_add_f32 v[32:33], v[32:33], v[34:35]
    v_pk_add_f32 v[36:37], v[36:37], v[38:39]
    v_pk_add_f32 v[24:25], v[24:25], v[28:29]
    v_pk_add_f32 v[32:33], v[32:33], v[36:37]
    v_add_f32 v20, v24, v32
    v_add_f32 v22, v25, v33
    s_mov_b32 exec_hi, 0
    buffer_store_dwordx4 v[20:23], v12, s[56:59], s78 offen sc1
    s_and_b32 s99, s39, 1
    s_cmp_lg_u32 s99, 0
    s_cbranch_scc1 NOSTAT
    s_waitcnt lgkmcnt(0)
    v_pk_add_f32 v[40:41], v[40:41], v[42:43]
    v_pk_add_f32 v[44:45], v[44:45], v[46:47]
    v_pk_add_f32 v[40:41], v[40:41], v[44:45]
    v_mov_b32 v24, s65
    v_mov_b32 v25, s66
    v_add_f32 v26, v40, v41
    v_mov_b32 v27, s66
    s_lshl_b32 s98, s35, 2
    s_lshr_b32 s99, s39, 1
    s_add_u32 s98, s98, s99
    s_lshl_b32 s97, s98, 8
    s_lshl_b32 s99, s36, 4
    s_add_u32 s97, s97, s99
    s_add_u32 s97, s97, {OSTAT}
    s_lshl_b32 s98, s98, 9
    s_lshl_b32 s99, s36, 2
    s_add_u32 s98, s98, s99
    s_add_u32 s98, s98, {OFLAG}
    v_lshlrev_b32 v28, 7, v1
    s_mov_b64 exec, 1
    buffer_store_dwordx4 v[24:27], v28, s[56:59], s97 offen sc1
    s_mov_b64 exec, 15
    buffer_store_dword v25, v28, s[56:59], s98 offen sc1
NOSTAT:
    s_mov_b64 exec, -1
    s_waitcnt lgkmcnt(0)
    """)
    stamp()
    if WOPOS == "afterO":
        ldWO()
    if PACE:
        for j in range(WO1, 4): ldWO1(j)
    elif WOPOS == "afterV":
        for j in range(WSPL, 4): ldWO1(j)
    a(f"""
    s_lshr_b32 s98, s36, 2        ; hh
    s_lshl_b32 s99, s35, 2
    s_add_u32 s98, s98, s99       ; grp*4+hh
    s_lshl_b32 s79, s35, 4
    s_add_u32 s79, s79, s36
    s_lshl_b32 s79, s79, 7
    s_add_u32 s79, s79, {OFLAG}
    s_lshl_b32 s97, s98, 8
    s_add_u32 s97, s97, {OSTAT}
    s_lshl_b32 s78, s35, 16
    s_lshr_b32 s98, s36, 2
    s_lshl_b32 s98, s98, 10
    s_add_u32 s78, s78, s98
    s_lshl_b32 s98, s39, 7
    s_add_u32 s78, s78, s98
    s_add_u32 s78, s78, {OREC}
    v_lshlrev_b32 v12, 12, v3
    v_lshlrev_b32 v13, 5, v2
    v_add_u32 v12, v12, v13
    v_lshlrev_b32 v13, 4, v3
    v_lshlrev_b32 v11, 5, v3
    v_lshlrev_b32 v14, 4, v2
    v_add_u32 v11, v11, v14
    s_lshl_b32 s99, s39, 9
    v_add_u32 v11, s99, v11
    """)
    if hint2: hintpoll("OH", "s79", HTH)
    stamp()
    a(f"""
    buffer_load_dwordx4 v[64:67], v12, s[56:59], s78 offen sc1
    buffer_load_dwordx4 v[68:71], v12, s[56:59], s78 offen offset:16 sc1
    buffer_load_dwordx4 v[72:75], v13, s[56:59], s97 offen sc1
    s_waitcnt vmcnt(3)
    """)
    wmm(12)
    a(f"""
    s_mov_b32 s99, {SPIN}
    s_mov_b32 s98, 0x3FB8AA3B
    s_waitcnt vmcnt(0)
OCHK:
    v_cmpx_eq_u32 vcc, s66, v65
    v_cmpx_eq_u32 vcc, s66, v67
    v_cmpx_eq_u32 vcc, s66, v69
    v_cmpx_eq_u32 vcc, s66, v71
    v_cmpx_eq_u32 vcc, s66, v73
    v_cmpx_eq_u32 vcc, s66, v75
    s_not_b64 exec, exec
    s_cbranch_scc0 OOK
    s_sub_u32 s99, s99, 1
    s_cbranch_scc1 OOK
    buffer_load_dwordx4 v[64:67], v12, s[56:59], s78 offen sc1
    buffer_load_dwordx4 v[68:71], v12, s[56:59], s78 offen offset:16 sc1
    buffer_load_dwordx4 v[72:75], v13, s[56:59], s97 offen sc1
    s_mov_b64 exec, -1
    s_waitcnt vmcnt(0)
    s_branch OCHK
OOK:
    s_mov_b64 exec, -1
    s_nop 4
    v_max_f32_dpp v76, v72, v72 row_ror:8 row_mask:0xf bank_mask:0xf
    v_max_f32_dpp v76, v76, v76 row_ror:4 row_mask:0xf bank_mask:0xf
    v_max_f32_dpp v76, v76, v76 row_ror:2 row_mask:0xf bank_mask:0xf
    v_max_f32_dpp v76, v76, v76 row_ror:1 row_mask:0xf bank_mask:0xf
    v_sub_f32 v76, v72, v76
    v_mul_f32 v76, s98, v76
    v_exp_f32 v76, v76
    v_mul_f32 v80, v76, v74       ; f*l
    v_mul_f32 v81, v76, v64
    v_mul_f32 v82, v76, v66
    v_mul_f32 v83, v76, v68
    v_mul_f32 v84, v76, v70
    """)
    for r in (8, 4, 2, 1):
        for k in range(5):
            a(f"v_add_f32_dpp v{80+k}, v{80+k}, v{80+k} row_ror:{r} row_mask:0xf bank_mask:0xf")
    a(f"""
    v_rcp_f32 v80, v80
    v_mul_f32 v81, v81, v80
    v_mul_f32 v82, v82, v80
    v_mul_f32 v83, v83, v80
    v_mul_f32 v84, v84, v80
    v_cvt_pk_bf16_f32 v8, v81, v82
    v_cvt_pk_bf16_f32 v9, v83, v84
    s_mov_b32 s96, 0x00010001
    s_mov_b32 s97, 0x00010001
    """)
    for e in range(8):
        a(f"v_cndmask_b32 v{32+2*e}, 0, v8, s[96:97]")
        a(f"v_cndmask_b32 v{33+2*e}, 0, v9, s[96:97]")
        if e < 7: a("s_lshl_b64 s[96:97], s[96:97], 1")
    wmfma(12)
    a(f"""
    s_mov_b32 exec_hi, 0
    ds_write_b128 v11, v[12:15] offset:{L_QP}
    s_mov_b32 exec_hi, -1
    v_lshlrev_b32 v13, 3, v1      ; l*8
    v_lshlrev_b32 v12, 4, v1      ; l*16
    v_mov_b32 v21, s66
    v_mov_b32 v23, s66
    s_waitcnt lgkmcnt(0)
    s_barrier
    """)
    if ts == 2:
        a("s_memrealtime s[78:79]")
    if ts == 1:
        a(f"""
    s_memrealtime s[96:97]
    s_waitcnt lgkmcnt(0)
    s_add_u32 s84, s30, {TSOFF + (1<<20)}
    s_addc_u32 s85, s31, 0
    s_mov_b32 s86, 0x100000
    s_mov_b32 s87, 0x00020000
    s_lshl_b32 s88, s2, 3
    s_add_u32 s88, s88, s39
    s_lshl_b32 s88, s88, 7
    v_mov_b32 v4, 0
    s_mov_b64 exec, 1
        """)
        regs = [100] + [4+2*k for k in range(stampn[0])] + [96]
        for k, r in enumerate(regs):
            a(f"v_mov_b32 v2, s{r}")
            a(f"v_mov_b32 v3, s{r+1}")
            a(f"buffer_store_dwordx2 v[2:3], v4, s[84:87], s88 offen offset:{k*8}")
            a("s_nop 1")
        a("s_mov_b64 exec, -1")
    a(f"""
    s_cmp_eq_u32 s39, 0
    s_cbranch_scc1 FPUB
    s_cmp_lg_u32 s39, 1
    s_cbranch_scc1 END
    s_cmp_lt_u32 s34, 32
    s_cbranch_scc1 FINAL
    s_branch END
FPUB:
    """)
    for wp in range(8):
        a(f"ds_read_b64 v[{24+2*wp}:{25+2*wp}], v13 offset:{L_QP+wp*512}")
    a(f"""
    s_and_b32 s98, s36, 3
    s_lshl_b32 s98, s98, 6
    s_lshl_b32 s99, s35, 2
    s_add_u32 s98, s98, s99
    s_lshr_b32 s99, s36, 2
    s_add_u32 s98, s98, s99
    s_lshl_b32 s98, s98, 10
    s_add_u32 s98, s98, {FREC}
    s_waitcnt lgkmcnt(4)
    v_pk_add_f32 v[24:25], v[24:25], v[26:27]
    v_pk_add_f32 v[28:29], v[28:29], v[30:31]
    s_waitcnt lgkmcnt(0)
    v_pk_add_f32 v[32:33], v[32:33], v[34:35]
    v_pk_add_f32 v[36:37], v[36:37], v[38:39]
    v_pk_add_f32 v[24:25], v[24:25], v[28:29]
    v_pk_add_f32 v[32:33], v[32:33], v[36:37]
    v_add_f32 v20, v24, v32
    v_add_f32 v22, v25, v33
    buffer_store_dwordx4 v[20:23], v12, s[56:59], s98 offen sc1
    """)
    nst = stampn[0]
    def dump_ts(slot0, extra=None):
        a(f"""
    s_memrealtime s[96:97]
    s_waitcnt lgkmcnt(0)
    s_add_u32 s84, s30, {TSOFF}
    s_addc_u32 s85, s31, 0
    s_mov_b32 s86, 0x100000
    s_mov_b32 s87, 0x00020000
    s_lshl_b32 s88, s2, 9
    v_mov_b32 v1, 0
    s_mov_b64 exec, 1
        """)
        regs = [100] + [4+2*k for k in range(nst)] + [96]
        for k, r in enumerate(regs):
            a(f"v_mov_b32 v2, s{r}")
            a(f"v_mov_b32 v3, s{r+1}")
            a(f"buffer_store_dwordx2 v[2:3], v1, s[84:87], s88 offen offset:{(slot0+k)*8}")
            a("s_nop 1")
        return len(regs)
    if ts == 2:
        a("""
    s_memrealtime s[96:97]
    s_waitcnt lgkmcnt(0)
    s_mov_b32 s84, s28
    s_mov_b32 s85, s29
    s_mov_b32 s86, 256
    s_mov_b32 s87, 0x00020000
    v_mov_b32 v1, 0
    s_mov_b64 exec, 1
    s_not_b32 s99, s100
    v_mov_b32 v2, s99
    buffer_atomic_umax v2, v1, s[84:87], 0 offen offset:0
        """)
        regs = [100] + [4+2*k for k in range(nst)] + [78, 96]
        for k, r in enumerate(regs):
            a(f"v_mov_b32 v{3+k}, s{r}")
            a(f"buffer_atomic_umax v{3+k}, v1, s[84:87], 0 offen offset:{(1+k)*4}")
    if ts in (1,3):
        n = dump_ts(0)
        a(f"""
    v_mov_b32 v2, {n+1}
    v_mov_b32 v3, 0
    buffer_store_dwordx2 v[2:3], v1, s[84:87], s88 offen offset:{63*8}
    s_cmp_lt_u32 s34, 32
    s_cbranch_scc1 END
    v_mov_b32 v2, s96
    v_mov_b32 v3, s97
    buffer_store_dwordx2 v[2:3], v1, s[84:87], s88 offen offset:{n*8}
        """)
    FGL = """s_mov_b32 s46, 1024
    s_mov_b32 s47, 0x00020000"""
    if not EG:
        FGL += """
    s_mov_b32 s44, s24            ; gate_w
    s_mov_b32 s45, s25
    v_lshlrev_b32 v12, 4, v1      ; l*16
    buffer_load_dwordx4 v[64:67], v12, s[60:63], 0 offen
    buffer_load_dwordx4 v[68:71], v12, s[44:47], 0 offen"""
    a(f"""
    s_branch END
FINAL:
    {FGL}
    v_lshrrev_b32 v13, 3, v1
    v_lshlrev_b32 v13, 10, v13
    v_and_b32 v14, 7, v1
    v_lshlrev_b32 v14, 4, v14
    v_add_u32 v13, v13, v14
    s_lshr_b32 s98, s34, 3
    s_lshl_b32 s98, s98, 16
    s_and_b32 s99, s34, 7
    s_lshl_b32 s99, s99, 7
    s_add_u32 s98, s98, s99
    s_add_u32 s80, s98, {FREC}
    """)
    for j in range(1, 8): a(f"s_add_u32 s{80+j}, s80, {j*8192}")
    def recloads(b=96):
        for j in range(8):
            a(f"buffer_load_dwordx4 v[{b+4*j}:{b+3+4*j}], v13, s[56:59], s{80+j} offen sc1")
    recloads()
    if not EG: a("s_waitcnt vmcnt(8)")
    GV = 8
    if not EG:
        gatecalc(64, 68, 72)
        a("v_mov_b32 v10, v72\nv_mov_b32 v11, v73")
    else:
        a("v_mov_b32 v10, s90\nv_mov_b32 v11, s91")
    a(f"""
    s_mov_b32 s96, 0
    s_mov_b32 s97, -1
    v_cndmask_b32 v8, v10, v11, s[96:97]
    v_and_b32 v14, 7, v1
    v_lshlrev_b32 v14, 2, v14
    v_lshrrev_b32 v15, 4, v1
    v_and_b32 v15, 1, v15
    v_lshlrev_b32 v15, 1, v15
    v_add_u32 v14, v14, v15
    s_lshl_b32 s98, s34, 5
    s_mov_b32 s44, s26
    s_mov_b32 s45, s27
    s_mov_b32 s99, {SPIN}
    """)
    def fcheck(b):
        for j in range(8):
            a(f"v_cmpx_eq_u32 vcc, s66, v{b+1+4*j}")
            a(f"v_cmpx_eq_u32 vcc, s66, v{b+3+4*j}")
        a("s_not_b64 exec, exec")
    def fadd(b):
        a("s_mov_b64 exec, -1")
        for k in range(4):
            a(f"v_add_f32 v{32+2*k}, v{b+8*k}, v{b+8*k+4}")
            a(f"v_add_f32 v{33+2*k}, v{b+8*k+2}, v{b+8*k+6}")
    if FPIPE:
        if FSLEEP: a(f"s_sleep {FSLEEP}")
        recloads(64)
        a("FCHK:\ns_waitcnt vmcnt(8)")
        fcheck(96)
        a("s_cbranch_scc0 FOK")
        recloads(96)
        a("s_mov_b64 exec, -1\ns_waitcnt vmcnt(8)")
        fcheck(64)
        a("s_cbranch_scc0 FOKB")
        recloads(64)
        a("s_mov_b64 exec, -1\ns_sub_u32 s99, s99, 1\ns_cbranch_scc0 FCHK\ns_branch FOK\nFOKB:")
        fadd(64)
        a("s_branch FCOM\nFOK:")
        fadd(96)
        a("FCOM:")
    else:
        a("s_waitcnt vmcnt(0)\nFCHK:")
        fcheck(96)
        a("s_cbranch_scc0 FOK\ns_sub_u32 s99, s99, 1\ns_cbranch_scc1 FOK")
        recloads(96)
        a("s_mov_b64 exec, -1\ns_waitcnt vmcnt(0)\ns_branch FCHK\nFOK:")
        fadd(96)
    a(f"""
    v_add_f32 v48, v32, v34      ; A0
    v_add_f32 v50, v36, v38      ; B0
    v_add_f32 v49, v33, v35      ; A1
    v_add_f32 v51, v37, v39      ; B1
    v_permlane32_swap_b32 v48, v50
    v_permlane32_swap_b32 v49, v51
    v_add_f32 v48, v48, v50
    v_add_f32 v49, v49, v51
    v_permlane16_swap_b32 v48, v49
    v_add_f32 v48, v48, v49
    v_add_f32_dpp v48, v48, v48 row_ror:8 row_mask:0xf bank_mask:0xf
    v_cvt_pk_bf16_f32 v48, v48, v48
    v_lshlrev_b32 v48, 16, v48
    v_mul_f32 v48, v48, v8
    v_cvt_pk_bf16_f32 v48, v48, v48
    v_lshlrev_b32 v48, 16, v48
    v_mov_b32 v49, v48
    v_permlane32_swap_b32 v48, v49
    v_add_f32 v48, v48, v49
    v_cvt_pk_bf16_f32 v48, v48, v48
    s_mov_b32 exec_lo, 0x00ff00ff
    s_mov_b32 exec_hi, 0
    buffer_store_short v48, v14, s[44:47], s98 offen
    s_cmp_lg_u32 s34, 0
    s_cbranch_scc1 NOEPOCH
    s_add_u32 s64, s64, 1
    v_mov_b32 v2, s64
    v_mov_b32 v3, 0
    s_mov_b64 exec, 1
    buffer_store_dword v2, v3, s[56:59], 0 offen
NOEPOCH:
    """)
    if ts == 2:
        a(f"""
    s_waitcnt vmcnt(0)
    s_memrealtime s[96:97]
    s_waitcnt lgkmcnt(0)
    s_mov_b32 s84, s28
    s_mov_b32 s85, s29
    s_mov_b32 s86, 256
    s_mov_b32 s87, 0x00020000
    v_mov_b32 v1, 0
    s_mov_b64 exec, 1
    v_mov_b32 v2, s96
    buffer_atomic_umax v2, v1, s[84:87], 0 offen offset:{15*4}
        """)
    if ts in (1,3):
        a(f"""
    s_waitcnt vmcnt(0)
    s_memrealtime s[96:97]
    s_waitcnt lgkmcnt(0)
    s_add_u32 s84, s30, {TSOFF}
    s_addc_u32 s85, s31, 0
    s_mov_b32 s86, 0x100000
    s_mov_b32 s87, 0x00020000
    s_lshl_b32 s88, s2, 9
    v_mov_b32 v1, 0
    s_mov_b64 exec, 1
    v_mov_b32 v2, s96
    v_mov_b32 v3, s97
    buffer_store_dwordx2 v[2:3], v1, s[84:87], s88 offen offset:{(nst+2)*8}
        """)
    a("END:")
    open(name, "w").write(a.text(256, 512, LDS_BYTES, 128))
    mk.build(name)
    return a

if __name__ == "__main__":
    kw = {}
    name = sys.argv[1]
    for x in sys.argv[2:]:
        k, v = x.split("=")
        kw[k] = int(v) if v.lstrip("-").isdigit() else v
    a = gen(name, **kw)
    print("nops inserted:", a.nops, "lines:", len(a.lines))
```

```python
import sys
from asmlib import *
import mk

QFLAG = 0x8000
OFLAG = 0x50000
OSTAT = 0x4000
QREC  = 0x10000
FREC  = 0x80000
OREC  = 0x100000
TSOFF = 64 << 20
L_QP = 0
L_QB = 4096
L_MX = 5120
L_LS = 5248
L_OP = 8192
LDS_BYTES = 24576
SPIN = 100000

def gen(name, ts=False, NK1=8, NV1=4, WOPOS="afterQ", hint1=True, hint2=True, BAR0=1, BAR1=1, BARP=1, PF=0, TLBW=0, EG=0, FPIPE=0, HTH=0, FSLEEP=4, PACE=0, PW=3, WO1=2, WSPL=4, KDEL=-1, VSPL=8, RED=0, HELP="", WLATE=0):
    a = Asm()
    stampn = [0]
    def stamp():
        if not ts: return
        k = stampn[0]; stampn[0] += 1
        assert k < 10
        a(f"s_memrealtime s[{4+2*k}:{5+2*k}]")
    a(f"""
    s_cmp_ge_u32 s2, 256
    s_cbranch_scc1 END
    """)
    if ts: a("s_memrealtime s[100:101]")
    PFCODE = ""
    HELP0 = ""
    if HELP:
        pairs = [tuple(int(v) for v in p.split(":")) for p in HELP.split(",")]
        PT = 0; Lm = 0
        tab = [15]*8
        for l, h in pairs:
            tab[h] = l; Lm |= 1 << l
        for x in range(8): PT |= tab[x] << (4*x)
        HELP0 = f"""s_lshl_b32 s93, s32, 2
    s_mov_b32 s95, 0x{PT:08x}
    s_lshr_b32 s95, s95, s93
    s_and_b32 s95, s95, 15
    s_cmp_lg_u32 s95, 15
    s_cselect_b32 s93, 2, 1
    s_mov_b32 s80, {Lm}
    s_bitcmp1_b32 s80, s32
    s_cselect_b32 s93, 0, s93
    s_bitcmp1_b32 s36, 1
    s_cselect_b32 s93, s93, 1
    s_lshr_b32 s80, s33, 4
    s_lshl_b32 s95, s95, 1
    s_add_u32 s95, s95, s80
    s_and_b32 s81, s95, 7
    s_sub_u32 s81, s81, s38
    s_lshl_b32 s81, s81, 10
    s_add_u32 s80, s68, s81
    s_add_u32 s81, s80, 8192
    s_add_u32 s82, s80, 16384
    s_add_u32 s83, s80, 24576"""
    if RED == 0:
        REDCODE = "s_mov_b32 s34, s2"
    else:
        REDCODE = """s_sub_u32 s34, s32, 1
    s_cmp_eq_u32 s32, 4
    s_cselect_b32 s34, 31, s34
    s_cmp_eq_u32 s32, 7
    s_cselect_b32 s34, 3, s34
    s_min_u32 s34, s34, 31
    s_lshl_b32 s34, s34, 3
    s_add_u32 s34, s34, s33
    s_cmp_lt_u32 s33, 8
    s_cselect_b32 s34, s34, 255"""
    if PF:
        PFCODE = """s_getpc_b64 s[90:91]
PFBASE:
    v_lshlrev_b32 v120, 4, v0
    v_min_u32 v120, END-PFBASE, v120
    global_load_dword v121, v120, s[90:91]"""
    a(f"""
    s_load_dwordx16 s[4:19], s[0:1], 0
    s_load_dwordx8 s[20:27], s[0:1], 64
    s_load_dwordx4 s[28:31], s[0:1], 96
    {PFCODE}
    s_and_b32 s32, s2, 7          ; xcd
    s_lshr_b32 s33, s2, 3         ; slot
    s_lshr_b32 s34, s33, 4
    s_lshl_b32 s35, s32, 1
    s_add_u32 s35, s35, s34       ; grp
    {REDCODE}
    s_and_b32 s36, s33, 15        ; i
    s_lshr_b32 s37, s35, 3        ; branch
    s_and_b32 s38, s35, 7         ; kvh
    v_lshrrev_b32 v10, 6, v0      ; wave
    v_and_b32 v1, 63, v0          ; lane
    v_readfirstlane_b32 s39, v10  ; w
    v_lshrrev_b32 v2, 4, v1       ; g
    v_and_b32 v3, 15, v1          ; c
    v_lshlrev_b32 v11, 4, v3      ; c*16
    v_lshlrev_b32 v4, 15, v2
    v_add_u32 v4, v4, v11
    v_lshlrev_b32 v7, 12, v2
    v_add_u32 v7, v7, v11
    v_lshrrev_b32 v5, 2, v3
    v_lshlrev_b32 v5, 8, v5       ; row*256
    v_lshlrev_b32 v10, 6, v2      ; g*64
    v_add_u32 v5, v5, v10
    v_and_b32 v10, 3, v1
    v_lshlrev_b32 v10, 4, v10
    v_add_u32 v5, v5, v10         ; K voffset
    v_lshlrev_b32 v6, 4, v1       ; V voffset = l*16
    v_lshlrev_b32 v10, 3, v2      ; x voffset = g*8
    s_and_b32 s96, s36, 3
    s_lshr_b32 s97, s36, 2        ; hh
    s_lshl_b32 s98, s38, 2
    s_add_u32 s98, s98, s97
    s_lshl_b32 s68, s96, 20
    s_lshl_b32 s99, s39, 17
    s_add_u32 s68, s68, s99
    s_lshl_b32 s99, s98, 8
    s_add_u32 s68, s68, s99
    s_add_u32 s69, s68, 8192
    s_add_u32 s70, s68, 16384
    s_add_u32 s71, s68, 24576
    s_lshl_b32 s75, s96, 8
    s_lshl_b32 s99, s39, 5
    s_add_u32 s75, s75, s99
    s_lshl_b32 s72, s38, 23
    s_add_u32 s72, s72, {28672*256}
    s_lshl_b32 s99, s36, 16
    s_add_u32 s72, s72, s99
    s_lshl_b32 s99, s39, 13
    s_add_u32 s72, s72, s99       ; K/V soffset
    s_add_u32 s73, s72, 4096
    s_lshl_b32 s74, s98, 17
    s_lshl_b32 s99, s39, 14
    s_add_u32 s74, s74, s99
    s_lshl_b32 s99, s96, 8
    s_add_u32 s74, s74, s99
    {HELP0}
    s_cmp_eq_u32 s37, 0
    s_mov_b32 s50, 0x400000
    s_mov_b32 s51, 0x00020000
    s_mov_b32 s62, 1024
    s_mov_b32 s63, 0x00020000
    s_mov_b32 s42, 0x4000000
    s_mov_b32 s43, 0x00020000
    s_waitcnt lgkmcnt(0)
    s_cselect_b32 s48, s10, s20   ; wq
    s_cselect_b32 s49, s11, s21
    s_mov_b32 s60, s4             ; x
    s_mov_b32 s61, s5
    """)
    if HELP:
        a("s_cselect_b32 s92, 1, 0\ns_cmp_eq_u32 s93, 0\ns_cbranch_scc1 NOH1")
    a("buffer_load_dwordx2 v[8:9], v10, s[60:63], s75 offen")
    for j in range(4):
        a(f"buffer_load_dwordx4 v[{48+4*j}:{51+4*j}], v4, s[48:51], s{68+j} offen nt")
    if HELP:
        a("""
    s_cmp_lg_u32 s93, 2
    s_cbranch_scc1 NOH1
    s_cmp_lt_u32 s95, 8
    s_cselect_b32 s88, s10, s20
    s_cselect_b32 s89, s11, s21
    s_mov_b32 s90, 0x400000
    s_mov_b32 s91, 0x00020000
        """)
        for j in range(4):
            a(f"buffer_load_dwordx4 v[{112+4*j}:{115+4*j}], v4, s[88:91], s{80+j} offen nt")
        a("NOH1:\ns_cmp_eq_u32 s92, 1")
    a(f"""
    s_cselect_b32 s40, s6, s16    ; K
    s_cselect_b32 s41, s7, s17
    """)
    if EG:
        a(f"""
    s_mov_b32 s84, s24            ; gate_w
    s_mov_b32 s85, s25
    s_mov_b32 s86, 1024
    s_mov_b32 s87, 0x00020000
    s_cselect_b32 s92, 1, 0
    s_cmp_eq_u32 s39, 1
    s_cselect_b32 s94, 1, 0
    s_cmp_lt_u32 s34, 32
    s_cselect_b32 s94, s94, 0
    s_cmp_eq_u32 s94, 0
    s_cbranch_scc1 SKIPG
    buffer_load_dwordx4 v[96:99], v6, s[60:63], 0 offen
    buffer_load_dwordx4 v[100:103], v6, s[84:87], 0 offen
SKIPG:
    s_cmp_eq_u32 s92, 1
        """)
    if PACE: NK1 = 0; NV1 = 0; BAR0 = 0; BAR1 = 0; BARP = 0; WOPOS = "pace"
    if BAR0: a("s_barrier")
    def ldK(j):
        a(f"buffer_load_dwordx4 v[{64+4*j}:{67+4*j}], v5, s[40:43], s{72 + (j>>2)} offen offset:{(j&3)*1024} nt")
    def ldV(j):
        a(f"buffer_load_dwordx4 v[{96+4*j}:{99+4*j}], v6, s[44:47], s{72 + (j>>2)} offen offset:{(j&3)*1024} nt")
    def ldWO():
        for j in range(4):
            a(f"buffer_load_dwordx4 v[{48+4*j}:{51+4*j}], v7, s[52:55], s74 offen offset:{j*1024} nt")
    if KDEL < 0:
        for j in range(NK1): ldK(j)
    TLBCODE = ""
    if TLBW:
        TLBCODE = """s_load_dword s92, s[44:45], s72
    s_load_dword s93, s[52:53], s74"""
    a(f"""
    s_load_dword s64, s[30:31], 0     ; epoch
    s_cselect_b32 s44, s8, s18    ; V
    s_cselect_b32 s45, s9, s19
    s_mov_b32 s46, 0x4000000
    s_mov_b32 s47, 0x00020000
    s_cselect_b32 s52, s12, s22   ; wo
    s_cselect_b32 s53, s13, s23
    s_mov_b32 s54, 0x400000
    s_mov_b32 s55, 0x00020000
    s_mov_b32 s56, s30            ; ws
    s_mov_b32 s57, s31
    s_mov_b32 s58, 0x400000
    s_mov_b32 s59, 0x00020000
    {TLBCODE}
    s_mov_b32 s76, 0x05040100
    s_mov_b32 s77, 0x07060302
    v_lshlrev_b32 v11, 5, v3
    v_lshlrev_b32 v12, 4, v2
    v_add_u32 v11, v11, v12
    s_lshl_b32 s99, s39, 9
    v_add_u32 v11, s99, v11       ; v11 = w*512 + c*32 + g*16
    """)
    stamp()
    if HELP:
        a("s_cmp_eq_u32 s93, 0\ns_cbranch_scc1 QSKIP")
    a(f"s_waitcnt vmcnt({4+(NK1 if KDEL < 0 else 0)})")
    a("s_mov_b32 s96, 0x00010001\ns_mov_b32 s97, 0x00010001")
    for e in range(8):
        a(f"v_cndmask_b32 v{32+2*e}, 0, v8, s[96:97]")
        a(f"v_cndmask_b32 v{33+2*e}, 0, v9, s[96:97]")
        if e < 7: a("s_lshl_b64 s[96:97], s[96:97], 1")
    def wmm(acc):
        for e in range(8):
            pr = e >> 1; sel = "s76" if (e & 1) == 0 else "s77"
            a(f"v_perm_b32 v{16+2*e}, v{52+pr}, v{48+pr}, {sel}")
            a(f"v_perm_b32 v{17+2*e}, v{60+pr}, v{56+pr}, {sel}")
    def wmfma(acc):
        for e in range(8):
            c = "0" if e == 0 else f"v[{acc}:{acc+3}]"
            a(f"v_mfma_f32_16x16x16_bf16 v[{acc}:{acc+3}], v[{32+2*e}:{33+2*e}], v[{16+2*e}:{17+2*e}], {c}")
    def gatecalc(X, G, T):
        for k in range(4):
            a(f"v_lshlrev_b32 v{T+2*k}, 16, v{X+k}")
            a(f"v_and_b32 v{T+1+2*k}, 0xffff0000, v{X+k}")
            a(f"v_lshlrev_b32 v{T+8+2*k}, 16, v{G+k}")
            a(f"v_and_b32 v{T+9+2*k}, 0xffff0000, v{G+k}")
        for k in range(8): a(f"v_mul_f32 v{T+k}, v{T+k}, v{T+8+k}")
        for k in range(4): a(f"v_cvt_pk_bf16_f32 v{T+8+k}, v{T+2*k}, v{T+1+2*k}")
        for k in range(4):
            a(f"v_lshlrev_b32 v{T+2*k}, 16, v{T+8+k}")
            a(f"v_and_b32 v{T+1+2*k}, 0xffff0000, v{T+8+k}")
        a(f"""
    v_add_f32 v{T}, v{T}, v{T+1}
    v_add_f32 v{T+2}, v{T+2}, v{T+3}
    v_add_f32 v{T+4}, v{T+4}, v{T+5}
    v_add_f32 v{T+6}, v{T+6}, v{T+7}
    v_add_f32 v{T}, v{T}, v{T+2}
    v_add_f32 v{T+4}, v{T+4}, v{T+6}
    v_add_f32 v{T}, v{T}, v{T+4}
    v_add_f32_dpp v{T}, v{T}, v{T} row_ror:8 row_mask:0xf bank_mask:0xf
    v_add_f32_dpp v{T}, v{T}, v{T} row_ror:4 row_mask:0xf bank_mask:0xf
    v_add_f32_dpp v{T}, v{T}, v{T} row_ror:2 row_mask:0xf bank_mask:0xf
    v_add_f32_dpp v{T}, v{T}, v{T} row_ror:1 row_mask:0xf bank_mask:0xf
    v_mov_b32 v{T+1}, v{T}
    v_permlane16_swap_b32 v{T}, v{T+1}
    v_add_f32 v{T}, v{T}, v{T+1}
    v_mov_b32 v{T+1}, v{T}
    v_permlane32_swap_b32 v{T}, v{T+1}
    v_add_f32 v{T}, v{T}, v{T+1}
    v_cvt_pk_bf16_f32 v{T}, v{T}, v{T}
    v_lshlrev_b32 v{T}, 16, v{T}          ; bf16(sum)
    v_mul_f32 v{T}, 0xBFB8AA3B, v{T}      ; -log2e * s
    v_exp_f32 v{T}, v{T}
    v_add_f32 v{T}, 1.0, v{T}
    v_rcp_f32 v{T}, v{T}
    v_cvt_pk_bf16_f32 v{T}, v{T}, v{T}
    v_lshlrev_b32 v{T}, 16, v{T}          ; g (bf16)
    v_sub_f32 v{T+1}, 1.0, v{T}
    v_cvt_pk_bf16_f32 v{T+1}, v{T+1}, v{T+1}
    v_lshlrev_b32 v{T+1}, 16, v{T+1}          ; 1-g (bf16)
        """)
    if PACE:
        for j in range(PW):
            a(f"s_waitcnt vmcnt(3)")
            ldK(j)
        if PW == 3: a("s_waitcnt vmcnt(3)")
        elif PW == 4: a("s_waitcnt vmcnt(4)")
        else: a(f"s_waitcnt vmcnt({PW})")
    else:
        if KDEL >= 0:
            a(f"s_waitcnt vmcnt({3-KDEL})")
            for j in range(NK1): ldK(j)
        a(f"s_waitcnt vmcnt({NK1})")
    stamp()
    wmm(12)
    wmfma(12)
    if HELP:
        a("s_cmp_lg_u32 s93, 2\ns_cbranch_scc1 NOH2")
        for e in range(8):
            pr = e >> 1; sel = "s76" if (e & 1) == 0 else "s77"
            a(f"v_perm_b32 v{48+2*e}, v{116+pr}, v{112+pr}, {sel}")
            a(f"v_perm_b32 v{49+2*e}, v{124+pr}, v{120+pr}, {sel}")
        for e in range(8):
            c = "0" if e == 0 else "v[116:119]"
            a(f"v_mfma_f32_16x16x16_bf16 v[116:119], v[{32+2*e}:{33+2*e}], v[{48+2*e}:{49+2*e}], {c}")
        a(f"""
    s_nop 7
    s_nop 7
    s_mov_b32 exec_hi, 0
    ds_write_b128 v11, v[116:119] offset:{L_OP}
    s_mov_b32 exec_hi, -1
NOH2:
    s_nop 7
        """)
    a(f"""
    s_waitcnt lgkmcnt(0)
    s_mul_i32 s66, s64, 0x9E3779B1
    s_add_u32 s66, s66, 0x3C6EF372   ; T
    s_mov_b32 s67, s66
    s_mov_b32 exec_hi, 0
    ds_write_b128 v11, v[12:15] offset:{L_QP}
    s_mov_b32 exec_hi, -1
    v_and_b32 v12, 7, v1
    v_lshlrev_b32 v13, 3, v12
    s_lshl_b32 s99, s39, 6
    v_add_u32 v13, s99, v13       ; w*64 + p*8
    v_lshlrev_b32 v12, 4, v12
    s_lshl_b32 s99, s39, 7
    v_add_u32 v12, s99, v12
    s_lshl_b32 s98, s35, 4
    s_add_u32 s98, s98, s36
    s_lshl_b32 s78, s98, 10
    s_add_u32 s78, s78, {QREC}
    v_mov_b32 v21, s66
    v_mov_b32 v23, s66
    s_waitcnt lgkmcnt(0)
    s_barrier
    """)
    for wp in range(8):
        a(f"ds_read_b64 v[{24+2*(wp&3)}:{25+2*(wp&3)}], v13 offset:{L_QP+wp*512}" if wp < 4 else
          f"ds_read_b64 v[{32+2*(wp&3)}:{33+2*(wp&3)}], v13 offset:{L_QP+wp*512}")
    a(f"""
    s_waitcnt lgkmcnt(4)
    v_pk_add_f32 v[24:25], v[24:25], v[26:27]
    v_pk_add_f32 v[28:29], v[28:29], v[30:31]
    s_waitcnt lgkmcnt(0)
    v_pk_add_f32 v[32:33], v[32:33], v[34:35]
    v_pk_add_f32 v[36:37], v[36:37], v[38:39]
    v_pk_add_f32 v[24:25], v[24:25], v[28:29]
    v_pk_add_f32 v[32:33], v[32:33], v[36:37]
    v_add_f32 v20, v24, v32
    v_add_f32 v22, v25, v33
    v_mov_b32 v14, v12
    s_mov_b64 exec, 0xff
    buffer_store_dwordx4 v[20:23], v12, s[56:59], s78 offen sc1
    s_cmp_lg_u32 s39, 0
    s_cbranch_scc1 NOQFLAG
    s_lshl_b32 s99, s35, 11
    s_add_u32 s99, s99, {QFLAG}
    s_mov_b64 exec, 0xffff
    v_lshlrev_b32 v12, 7, v1
    s_lshl_b32 s98, s36, 2
    s_add_u32 s99, s99, s98
    buffer_store_dword v21, v12, s[56:59], s99 offen sc1
NOQFLAG:
    s_mov_b64 exec, -1
    """)
    if HELP:
        a("s_cmp_lg_u32 s93, 2\ns_cbranch_scc1 QDONE")
        for wp in range(8):
            a(f"ds_read_b64 v[{24+2*wp}:{25+2*wp}], v13 offset:{L_OP+wp*512}")
        a(f"""
    s_lshl_b32 s98, s95, 4
    s_add_u32 s98, s98, s36
    s_lshl_b32 s78, s98, 10
    s_add_u32 s78, s78, {QREC}
    v_mov_b32 v41, s66
    v_mov_b32 v43, s66
    s_waitcnt lgkmcnt(4)
    v_pk_add_f32 v[24:25], v[24:25], v[26:27]
    v_pk_add_f32 v[28:29], v[28:29], v[30:31]
    s_waitcnt lgkmcnt(0)
    v_pk_add_f32 v[32:33], v[32:33], v[34:35]
    v_pk_add_f32 v[36:37], v[36:37], v[38:39]
    v_pk_add_f32 v[24:25], v[24:25], v[28:29]
    v_pk_add_f32 v[32:33], v[32:33], v[36:37]
    v_add_f32 v40, v24, v32
    v_add_f32 v42, v25, v33
    s_mov_b64 exec, 0xff
    buffer_store_dwordx4 v[40:43], v14, s[56:59], s78 offen sc1
    s_cmp_lg_u32 s39, 0
    s_cbranch_scc1 NOQFLAG2
    s_lshl_b32 s99, s95, 11
    s_add_u32 s99, s99, {QFLAG}
    s_mov_b64 exec, 0xffff
    v_lshlrev_b32 v14, 7, v1
    s_lshl_b32 s98, s36, 2
    s_add_u32 s99, s99, s98
    buffer_store_dword v41, v14, s[56:59], s99 offen sc1
NOQFLAG2:
    s_mov_b64 exec, -1
    s_branch QDONE
QSKIP:
    s_waitcnt vmcnt(8) lgkmcnt(0)
    s_mul_i32 s66, s64, 0x9E3779B1
    s_add_u32 s66, s66, 0x3C6EF372   ; T
    s_mov_b32 s67, s66
QDONE:
        """)
    stamp()
    if BARP: a("s_barrier")
    nafter = 0
    if PACE:
        KA = min(8, 2*PW)
        for j in range(PW, KA):
            a(f"s_waitcnt vmcnt({PW-1})")
            ldK(j)
    else:
        for j in range(NK1, 8): ldK(j)
    for j in range(NV1): ldV(j)
    if EG:
        a("s_cmp_eq_u32 s94, 0\ns_cbranch_scc1 SKIPG2")
        gatecalc(96, 100, 104)
        a("v_readfirstlane_b32 s90, v104\nv_readfirstlane_b32 s91, v105\nSKIPG2:")
    def hintpoll(lbl, offreg, th=0):
        a(f"""
    s_cmp_lg_u32 s39, 0
    s_cbranch_scc1 {lbl}_B
    s_mov_b32 s99, {SPIN}
{lbl}:
    s_load_dwordx16 s[80:95], s[30:31], {offreg} glc
    s_sub_u32 s99, s99, 1
    s_cbranch_scc1 {lbl}_X
    s_waitcnt lgkmcnt(0)
        """)
        if th:
            a("s_mov_b32 s98, 0")
            for k in range(8):
                a(f"s_cmp_eq_u64 s[{80+2*k}:{81+2*k}], s[66:67]")
                a("s_addc_u32 s98, s98, 0")
            a(f"s_cmp_lt_u32 s98, {th}")
        else:
            for k in range(8):
                a(f"s_xor_b64 s[{80+2*k}:{81+2*k}], s[{80+2*k}:{81+2*k}], s[66:67]")
            for k in range(1, 8):
                a(f"s_or_b64 s[80:81], s[80:81], s[{80+2*k}:{81+2*k}]")
        a(f"""
    s_cbranch_scc1 {lbl}
{lbl}_X:
    s_waitcnt lgkmcnt(0)
{lbl}_B:
    s_barrier
        """)
    a(f"""
    s_lshl_b32 s79, s35, 4
    s_add_u32 s79, s79, s36
    s_lshl_b32 s79, s79, 7
    s_add_u32 s79, s79, {QFLAG}
    v_lshrrev_b32 v12, 5, v1
    v_and_b32 v13, 31, v1
    v_lshlrev_b32 v14, 10, v12
    v_lshlrev_b32 v15, 4, v13
    v_add_u32 v14, v14, v15       ; v14 = Q voffset
    s_lshr_b32 s98, s39, 1        ; hq
    s_and_b32 s97, s39, 1         ; hf
    s_lshl_b32 s78, s35, 14
    s_lshl_b32 s99, s98, 12
    s_add_u32 s78, s78, s99
    s_lshl_b32 s99, s97, 9
    s_add_u32 s78, s78, s99
    s_add_u32 s78, s78, {QREC}
    v_lshlrev_b32 v15, 2, v13
    v_lshlrev_b32 v12, 1, v12
    v_add_u32 v15, v15, v12
    s_lshl_b32 s99, s98, 8
    s_lshl_b32 s97, s97, 7
    s_add_u32 s99, s99, s97
    v_add_u32 v15, s99, v15
    """)
    if hint1: hintpoll("QH", "s79")
    stamp()
    a(f"""
    buffer_load_dwordx4 v[16:19], v14, s[56:59], s78 offen sc1
    buffer_load_dwordx4 v[20:23], v14, s[56:59], s78 offen offset:2048 sc1
    """)
    if BAR1: a("s_barrier")
    if PACE:
        rest = [("K", j) for j in range(KA, 8)] + [("V", j) for j in range(8)]
        def ld(t):
            (ldK if t[0] == "K" else ldV)(t[1])
        n1 = PW
        for k in range(n1):
            a(f"s_waitcnt vmcnt({PW-1+2})")
            ld(rest.pop(0))
        nafter = n1
    else:
        for j in range(NV1, 8): ldV(j)
        nafter = 8 - NV1
    if WOPOS == "withV":
        ldWO(); nafter += 4
    a(f"""
    v_lshrrev_b32 v12, 2, v3
    v_lshlrev_b32 v12, 8, v12
    v_lshlrev_b32 v13, 6, v2
    v_add_u32 v12, v12, v13
    v_and_b32 v13, 3, v1
    v_lshlrev_b32 v13, 4, v13
    v_add_u32 v12, v12, v13
    s_mov_b32 s99, {SPIN}
    s_waitcnt vmcnt({nafter})
QCHK:
    v_cmpx_eq_u32 vcc, s66, v17
    v_cmpx_eq_u32 vcc, s66, v19
    v_cmpx_eq_u32 vcc, s66, v21
    v_cmpx_eq_u32 vcc, s66, v23
    s_cmp_eq_u64 exec, -1
    s_mov_b64 exec, -1
    s_cbranch_scc1 QOK
    s_sub_u32 s99, s99, 1
    s_cbranch_scc1 QOK
    buffer_load_dwordx4 v[16:19], v14, s[56:59], s78 offen sc1
    buffer_load_dwordx4 v[20:23], v14, s[56:59], s78 offen offset:2048 sc1
    s_waitcnt vmcnt(0)
    s_branch QCHK
QOK:
    v_add_f32 v16, v16, v20
    v_add_f32 v18, v18, v22
    v_permlane32_swap_b32 v16, v18
    v_add_f32 v16, v16, v18
    v_cvt_pk_bf16_f32 v16, v16, v16
    ds_write_b16 v15, v16 offset:{L_QB}
    """)
    stamp()
    if WOPOS == "afterQ":
        ldWO()
    a(f"""
    s_waitcnt lgkmcnt(0)
    s_barrier
    ds_read_b128 v[8:11], v12 offset:{L_QB}
    """)
    if PACE:
        issued = [("K", j) for j in range(KA)] + ["Q", "Q"] + ([("K", j) for j in range(KA, 8)] + [("V", j) for j in range(8)])[:n1]
        while True:
            infl = issued[-PW:]
            if all(t[0] == "V" for t in infl): break
            a(f"s_waitcnt vmcnt({PW-1})")
            t = rest.pop(0); ld(t); issued.append(t)
        k7 = issued.index(("K", 7))
        a(f"s_waitcnt vmcnt({len(issued)-1-k7})")
    a(f"""
    v_lshrrev_b32 v13, 2, v3
    v_lshlrev_b32 v13, 5, v13
    s_lshl_b32 s99, s39, 2
    v_add_u32 v14, s99, v13       ; h*32 + w*4
    s_waitcnt lgkmcnt(0)
    """)
    def Dj(j): return 16 + 4*j if j < 4 else 64 + 4*(j-4)
    for j in range(8):
        a(f"v_mfma_f32_16x16x32_bf16 v[{Dj(j)}:{Dj(j)+3}], v[{64+4*j}:{67+4*j}], v[8:11], 0")
    if PACE and rest: t = rest.pop(0); ld(t); issued.append(t)
    for half in range(2):
        js = range(4*half, 4*half+4)
        for j in js: a(f"v_mov_b32_dpp v{32+j}, v{Dj(j)} quad_perm:[0,0,0,0] row_mask:0xf bank_mask:0xf")
        for b in range(1, 4):
            for j in js: a(f"v_add_f32_dpp v{32+j}, v{Dj(j)+b}, v{32+j} quad_perm:[{b},{b},{b},{b}] row_mask:0xf bank_mask:0xf")
    a("s_mov_b32 s98, 0x3DB504F3")
    for u in range(4): a(f"v_cvt_pk_bf16_f32 v{40+u}, v{32+2*u}, v{33+2*u}")
    for u in range(4):
        a(f"v_lshlrev_b32 v{32+2*u}, 16, v{40+u}")
        a(f"v_and_b32 v{33+2*u}, 0xffff0000, v{40+u}")
    for j in range(8): a(f"v_mul_f32 v{32+j}, s98, v{32+j}")
    for u in range(4): a(f"v_cvt_pk_bf16_f32 v{40+u}, v{32+2*u}, v{33+2*u}")
    for u in range(4):
        a(f"v_lshlrev_b32 v{32+2*u}, 16, v{40+u}")
        a(f"v_and_b32 v{33+2*u}, 0xffff0000, v{40+u}")
    a(f"""
    v_max3_f32 v40, v32, v33, v34
    v_max3_f32 v41, v35, v36, v37
    v_max3_f32 v40, v40, v38, v39
    v_max_f32 v40, v40, v41
    v_mov_b32 v41, v40
    v_permlane32_swap_b32 v40, v41
    v_max_f32 v40, v40, v41
    v_mov_b32 v41, v40
    v_permlane16_swap_b32 v40, v41
    v_max_f32 v40, v40, v41
    s_mov_b64 exec, 0x1111
    ds_write_b32 v14, v40 offset:{L_MX}
    s_mov_b64 exec, -1
    s_waitcnt lgkmcnt(0)
    s_barrier
    ds_read_b128 v[40:43], v13 offset:{L_MX}
    ds_read_b128 v[44:47], v13 offset:{L_MX+16}
    s_mov_b32 s98, 0x3FB8AA3B     ; log2(e)
    s_waitcnt lgkmcnt(0)
    v_max3_f32 v40, v40, v41, v42
    v_max3_f32 v44, v44, v45, v46
    v_max3_f32 v40, v40, v43, v47
    v_max_f32 v10, v40, v44
    """)
    if PACE and rest: t = rest.pop(0); ld(t); issued.append(t)
    for j in range(8): a(f"v_sub_f32 v{32+j}, v{32+j}, v10")
    for j in range(8): a(f"v_mul_f32 v{32+j}, s98, v{32+j}")
    for j in range(8): a(f"v_exp_f32 v{32+j}, v{32+j}")
    a(f"""
    v_add_f32 v40, v32, v33
    v_add_f32 v41, v34, v35
    v_add_f32 v42, v36, v37
    v_add_f32 v43, v38, v39
    v_add_f32 v40, v40, v41
    v_add_f32 v42, v42, v43
    v_add_f32 v40, v40, v42
    v_cvt_pk_bf16_f32 v24, v32, v33
    v_cvt_pk_bf16_f32 v25, v34, v35
    v_cvt_pk_bf16_f32 v26, v36, v37
    v_cvt_pk_bf16_f32 v27, v38, v39
    v_mov_b32 v41, v40
    v_permlane32_swap_b32 v40, v41
    v_add_f32 v40, v40, v41
    v_mov_b32 v41, v40
    v_permlane16_swap_b32 v40, v41
    v_add_f32 v40, v40, v41
    s_mov_b64 exec, 0x1111
    ds_write_b32 v14, v40 offset:{L_LS}
    s_mov_b64 exec, -1
    s_mov_b32 s96, 0x11111111
    s_mov_b32 s97, 0x11111111
    """)
    for v in range(4):
        for u in range(4):
            a(f"v_cndmask_b32 v{32+4*v+u}, 0, v{24+u}, s[96:97]")
        if v < 3: a("s_lshl_b64 s[96:97], s[96:97], 1")
    if PACE and rest: t = rest.pop(0); ld(t); issued.append(t)
    stamp()
    if WOPOS == "afterP": ldWO()
    a(f"""
    v_lshlrev_b32 v11, 9, v2
    v_lshlrev_b32 v12, 5, v3
    v_add_u32 v11, v11, v12
    s_lshl_b32 s99, s39, 11
    v_add_u32 v11, s99, v11
    v_and_b32 v12, 31, v1
    v_lshlrev_b32 v13, 3, v12
    s_lshl_b32 s99, s39, 8
    v_add_u32 v13, s99, v13
    v_lshlrev_b32 v12, 4, v12
    s_lshl_b32 s98, s35, 4
    s_add_u32 s98, s98, s36
    s_lshl_b32 s78, s98, 12
    s_lshl_b32 s99, s39, 9
    s_add_u32 s78, s78, s99
    s_add_u32 s78, s78, {OREC}
    s_lshr_b32 s98, s39, 1        ; h
    s_lshl_b32 s99, s98, 2
    v_readlane_b32 s65, v10, s99
    s_lshl_b32 s99, s98, 5
    v_mov_b32 v14, s99
    """)
    wo_after = 4 if WOPOS in ("afterQ", "withV", "afterP") else 0
    def pv(half):
        V0 = 96 + 16*half; B0 = 64 + 16*half
        for e in range(8):
            pr = e >> 1; sel = "s76" if (e & 1) == 0 else "s77"
            a(f"v_perm_b32 v{B0+2*e}, v{V0+4+pr}, v{V0+pr}, {sel}")
            a(f"v_perm_b32 v{B0+2*e+1}, v{V0+12+pr}, v{V0+8+pr}, {sel}")
        for e in [0, 4, 1, 5, 2, 6, 3, 7]:
            acc = 16 if e < 4 else 20
            v = e & 3
            c = "0" if (half == 0 and v == 0) else f"v[{acc}:{acc+3}]"
            a(f"v_mfma_f32_16x16x16_bf16 v[{acc}:{acc+3}], v[{32+4*v+2*half}:{33+4*v+2*half}], v[{B0+2*e}:{B0+2*e+1}], {c}")
    def ldWO1(j):
        a(f"buffer_load_dwordx4 v[{48+4*j}:{51+4*j}], v7, s[52:55], s74 offen offset:{j*1024} nt")
    if PACE:
        while rest:
            a(f"s_waitcnt vmcnt({PW-1})")
            t = rest.pop(0); ld(t); issued.append(t)
        def after(t): return len(issued) - 1 - issued.index(t)
        a(f"s_waitcnt vmcnt({after(('V', 3))})")
        pv(0)
        for j in range(WO1):
            a(f"s_waitcnt vmcnt({PW-1})")
            ldWO1(j); issued.append(("W", j))
        a(f"s_waitcnt vmcnt({after(('V', 7))})")
        stamp()
        pv(1)
    else:
        a(f"s_waitcnt vmcnt({4+wo_after})")
        pv(0)
        a(f"s_waitcnt vmcnt({wo_after})")
        stamp()
        if WOPOS == "afterV":
            for j in range(WSPL): ldWO1(j)
        pv(1)
    a(f"""
    ds_write_b128 v11, v[16:19] offset:{L_OP}
    ds_write_b128 v11, v[20:23] offset:{L_OP+16}
    v_mov_b32 v21, s66
    v_mov_b32 v23, s66
    s_waitcnt lgkmcnt(0)
    s_barrier
    """)
    for wp in range(8):
        a(f"ds_read_b64 v[{24+2*wp}:{25+2*wp}], v13 offset:{L_OP+wp*2048}")
    a(f"""
    ds_read_b128 v[40:43], v14 offset:{L_LS}
    ds_read_b128 v[44:47], v14 offset:{L_LS+16}
    s_waitcnt lgkmcnt(6)
    v_pk_add_f32 v[24:25], v[24:25], v[26:27]
    v_pk_add_f32 v[28:29], v[28:29], v[30:31]
    s_waitcnt lgkmcnt(2)
    v_pk_add_f32 v[32:33], v[32:33], v[34:35]
    v_pk_add_f32 v[36:37], v[36:37], v[38:39]
    v_pk_add_f32 v[24:25], v[24:25], v[28:29]
    v_pk_add_f32 v[32:33], v[32:33], v[36:37]
    v_add_f32 v20, v24, v32
    v_add_f32 v22, v25, v33
    s_mov_b32 exec_hi, 0
    buffer_store_dwordx4 v[20:23], v12, s[56:59], s78 offen sc1
    s_and_b32 s99, s39, 1
    s_cmp_lg_u32 s99, 0
    s_cbranch_scc1 NOSTAT
    s_waitcnt lgkmcnt(0)
    v_pk_add_f32 v[40:41], v[40:41], v[42:43]
    v_pk_add_f32 v[44:45], v[44:45], v[46:47]
    v_pk_add_f32 v[40:41], v[40:41], v[44:45]
    v_mov_b32 v24, s65
    v_mov_b32 v25, s66
    v_add_f32 v26, v40, v41
    v_mov_b32 v27, s66
    s_lshl_b32 s98, s35, 2
    s_lshr_b32 s99, s39, 1
    s_add_u32 s98, s98, s99
    s_lshl_b32 s97, s98, 8
    s_lshl_b32 s99, s36, 4
    s_add_u32 s97, s97, s99
    s_add_u32 s97, s97, {OSTAT}
    s_lshl_b32 s98, s98, 9
    s_lshl_b32 s99, s36, 2
    s_add_u32 s98, s98, s99
    s_add_u32 s98, s98, {OFLAG}
    v_lshlrev_b32 v28, 7, v1
    s_mov_b64 exec, 1
    buffer_store_dwordx4 v[24:27], v28, s[56:59], s97 offen sc1
    s_mov_b64 exec, 15
    buffer_store_dword v25, v28, s[56:59], s98 offen sc1
NOSTAT:
    s_mov_b64 exec, -1
    s_waitcnt lgkmcnt(0)
    """)
    stamp()
    if WOPOS == "afterO":
        ldWO()
    if PACE:
        for j in range(WO1, 4): ldWO1(j)
    elif WOPOS == "afterV" and not WLATE:
        for j in range(WSPL, 4): ldWO1(j)
    a(f"""
    s_lshr_b32 s98, s36, 2        ; hh
    s_lshl_b32 s99, s35, 2
    s_add_u32 s98, s98, s99       ; grp*4+hh
    s_lshl_b32 s79, s35, 4
    s_add_u32 s79, s79, s36
    s_lshl_b32 s79, s79, 7
    s_add_u32 s79, s79, {OFLAG}
    s_lshl_b32 s97, s98, 8
    s_add_u32 s97, s97, {OSTAT}
    s_lshl_b32 s78, s35, 16
    s_lshr_b32 s98, s36, 2
    s_lshl_b32 s98, s98, 10
    s_add_u32 s78, s78, s98
    s_lshl_b32 s98, s39, 7
    s_add_u32 s78, s78, s98
    s_add_u32 s78, s78, {OREC}
    v_lshlrev_b32 v12, 12, v3
    v_lshlrev_b32 v13, 5, v2
    v_add_u32 v12, v12, v13
    v_lshlrev_b32 v13, 4, v3
    v_lshlrev_b32 v11, 5, v3
    v_lshlrev_b32 v14, 4, v2
    v_add_u32 v11, v11, v14
    s_lshl_b32 s99, s39, 9
    v_add_u32 v11, s99, v11
    """)
    if hint2: hintpoll("OH", "s79", HTH)
    stamp()
    a(f"""
    buffer_load_dwordx4 v[64:67], v12, s[56:59], s78 offen sc1
    buffer_load_dwordx4 v[68:71], v12, s[56:59], s78 offen offset:16 sc1
    buffer_load_dwordx4 v[72:75], v13, s[56:59], s97 offen sc1
    """)
    if WLATE:
        for j in range(WSPL, 4): ldWO1(j)
    else:
        a("s_waitcnt vmcnt(3)")
        wmm(12)
    a(f"""
    s_mov_b32 s99, {SPIN}
    s_mov_b32 s98, 0x3FB8AA3B
    s_waitcnt vmcnt({(4-WSPL) if WLATE else 0})
OCHK:
    v_cmpx_eq_u32 vcc, s66, v65
    v_cmpx_eq_u32 vcc, s66, v67
    v_cmpx_eq_u32 vcc, s66, v69
    v_cmpx_eq_u32 vcc, s66, v71
    v_cmpx_eq_u32 vcc, s66, v73
    v_cmpx_eq_u32 vcc, s66, v75
    s_not_b64 exec, exec
    s_cbranch_scc0 OOK
    s_sub_u32 s99, s99, 1
    s_cbranch_scc1 OOK
    buffer_load_dwordx4 v[64:67], v12, s[56:59], s78 offen sc1
    buffer_load_dwordx4 v[68:71], v12, s[56:59], s78 offen offset:16 sc1
    buffer_load_dwordx4 v[72:75], v13, s[56:59], s97 offen sc1
    s_mov_b64 exec, -1
    s_waitcnt vmcnt(0)
    s_branch OCHK
OOK:
    s_mov_b64 exec, -1
    s_nop 4
    v_max_f32_dpp v76, v72, v72 row_ror:8 row_mask:0xf bank_mask:0xf
    v_max_f32_dpp v76, v76, v76 row_ror:4 row_mask:0xf bank_mask:0xf
    v_max_f32_dpp v76, v76, v76 row_ror:2 row_mask:0xf bank_mask:0xf
    v_max_f32_dpp v76, v76, v76 row_ror:1 row_mask:0xf bank_mask:0xf
    v_sub_f32 v76, v72, v76
    v_mul_f32 v76, s98, v76
    v_exp_f32 v76, v76
    v_mul_f32 v80, v76, v74       ; f*l
    v_mul_f32 v81, v76, v64
    v_mul_f32 v82, v76, v66
    v_mul_f32 v83, v76, v68
    v_mul_f32 v84, v76, v70
    """)
    for r in (8, 4, 2, 1):
        for k in range(5):
            a(f"v_add_f32_dpp v{80+k}, v{80+k}, v{80+k} row_ror:{r} row_mask:0xf bank_mask:0xf")
    a(f"""
    v_rcp_f32 v80, v80
    v_mul_f32 v81, v81, v80
    v_mul_f32 v82, v82, v80
    v_mul_f32 v83, v83, v80
    v_mul_f32 v84, v84, v80
    v_cvt_pk_bf16_f32 v8, v81, v82
    v_cvt_pk_bf16_f32 v9, v83, v84
    s_mov_b32 s96, 0x00010001
    s_mov_b32 s97, 0x00010001
    """)
    for e in range(8):
        a(f"v_cndmask_b32 v{32+2*e}, 0, v8, s[96:97]")
        a(f"v_cndmask_b32 v{33+2*e}, 0, v9, s[96:97]")
        if e < 7: a("s_lshl_b64 s[96:97], s[96:97], 1")
    if WLATE:
        a("s_waitcnt vmcnt(0)")
        wmm(12)
    wmfma(12)
    a(f"""
    s_mov_b32 exec_hi, 0
    ds_write_b128 v11, v[12:15] offset:{L_QP}
    s_mov_b32 exec_hi, -1
    v_lshlrev_b32 v13, 3, v1      ; l*8
    v_lshlrev_b32 v12, 4, v1      ; l*16
    v_mov_b32 v21, s66
    v_mov_b32 v23, s66
    s_waitcnt lgkmcnt(0)
    s_barrier
    """)
    if ts == 2:
        a("s_memrealtime s[78:79]")
    if ts == 1:
        a(f"""
    s_memrealtime s[96:97]
    s_waitcnt lgkmcnt(0)
    s_add_u32 s84, s30, {TSOFF + (1<<20)}
    s_addc_u32 s85, s31, 0
    s_mov_b32 s86, 0x100000
    s_mov_b32 s87, 0x00020000
    s_lshl_b32 s88, s2, 3
    s_add_u32 s88, s88, s39
    s_lshl_b32 s88, s88, 7
    v_mov_b32 v4, 0
    s_mov_b64 exec, 1
        """)
        regs = [100] + [4+2*k for k in range(stampn[0])] + [96]
        for k, r in enumerate(regs):
            a(f"v_mov_b32 v2, s{r}")
            a(f"v_mov_b32 v3, s{r+1}")
            a(f"buffer_store_dwordx2 v[2:3], v4, s[84:87], s88 offen offset:{k*8}")
            a("s_nop 1")
        a("s_mov_b64 exec, -1")
    a(f"""
    s_cmp_eq_u32 s39, 0
    s_cbranch_scc1 FPUB
    s_cmp_lg_u32 s39, 1
    s_cbranch_scc1 END
    s_cmp_lt_u32 s34, 32
    s_cbranch_scc1 FINAL
    s_branch END
FPUB:
    """)
    for wp in range(8):
        a(f"ds_read_b64 v[{24+2*wp}:{25+2*wp}], v13 offset:{L_QP+wp*512}")
    a(f"""
    s_and_b32 s98, s36, 3
    s_lshl_b32 s98, s98, 6
    s_lshl_b32 s99, s35, 2
    s_add_u32 s98, s98, s99
    s_lshr_b32 s99, s36, 2
    s_add_u32 s98, s98, s99
    s_lshl_b32 s98, s98, 10
    s_add_u32 s98, s98, {FREC}
    s_waitcnt lgkmcnt(4)
    v_pk_add_f32 v[24:25], v[24:25], v[26:27]
    v_pk_add_f32 v[28:29], v[28:29], v[30:31]
    s_waitcnt lgkmcnt(0)
    v_pk_add_f32 v[32:33], v[32:33], v[34:35]
    v_pk_add_f32 v[36:37], v[36:37], v[38:39]
    v_pk_add_f32 v[24:25], v[24:25], v[28:29]
    v_pk_add_f32 v[32:33], v[32:33], v[36:37]
    v_add_f32 v20, v24, v32
    v_add_f32 v22, v25, v33
    buffer_store_dwordx4 v[20:23], v12, s[56:59], s98 offen sc1
    """)
    nst = stampn[0]
    def dump_ts(slot0, extra=None):
        a(f"""
    s_memrealtime s[96:97]
    s_waitcnt lgkmcnt(0)
    s_add_u32 s84, s30, {TSOFF}
    s_addc_u32 s85, s31, 0
    s_mov_b32 s86, 0x100000
    s_mov_b32 s87, 0x00020000
    s_lshl_b32 s88, s2, 9
    v_mov_b32 v1, 0
    s_mov_b64 exec, 1
        """)
        regs = [100] + [4+2*k for k in range(nst)] + [96]
        for k, r in enumerate(regs):
            a(f"v_mov_b32 v2, s{r}")
            a(f"v_mov_b32 v3, s{r+1}")
            a(f"buffer_store_dwordx2 v[2:3], v1, s[84:87], s88 offen offset:{(slot0+k)*8}")
            a("s_nop 1")
        return len(regs)
    if ts == 2:
        a("""
    s_memrealtime s[96:97]
    s_waitcnt lgkmcnt(0)
    s_mov_b32 s84, s28
    s_mov_b32 s85, s29
    s_mov_b32 s86, 256
    s_mov_b32 s87, 0x00020000
    v_mov_b32 v1, 0
    s_mov_b64 exec, 1
    s_not_b32 s99, s100
    v_mov_b32 v2, s99
    buffer_atomic_umax v2, v1, s[84:87], 0 offen offset:0
        """)
        regs = [100] + [4+2*k for k in range(nst)] + [78, 96]
        for k, r in enumerate(regs):
            a(f"v_mov_b32 v{3+k}, s{r}")
            a(f"buffer_atomic_umax v{3+k}, v1, s[84:87], 0 offen offset:{(1+k)*4}")
    if ts in (1,3):
        n = dump_ts(0)
        a(f"""
    v_mov_b32 v2, {n+1}
    v_mov_b32 v3, 0
    buffer_store_dwordx2 v[2:3], v1, s[84:87], s88 offen offset:{63*8}
    s_cmp_lt_u32 s34, 32
    s_cbranch_scc1 END
    v_mov_b32 v2, s96
    v_mov_b32 v3, s97
    buffer_store_dwordx2 v[2:3], v1, s[84:87], s88 offen offset:{n*8}
        """)
    FGL = """s_mov_b32 s46, 1024
    s_mov_b32 s47, 0x00020000"""
    if not EG:
        FGL += """
    s_mov_b32 s44, s24            ; gate_w
    s_mov_b32 s45, s25
    v_lshlrev_b32 v12, 4, v1      ; l*16
    buffer_load_dwordx4 v[64:67], v12, s[60:63], 0 offen
    buffer_load_dwordx4 v[68:71], v12, s[44:47], 0 offen"""
    a(f"""
    s_branch END
FINAL:
    {FGL}
    v_lshrrev_b32 v13, 3, v1
    v_lshlrev_b32 v13, 10, v13
    v_and_b32 v14, 7, v1
    v_lshlrev_b32 v14, 4, v14
    v_add_u32 v13, v13, v14
    s_lshr_b32 s98, s34, 3
    s_lshl_b32 s98, s98, 16
    s_and_b32 s99, s34, 7
    s_lshl_b32 s99, s99, 7
    s_add_u32 s98, s98, s99
    s_add_u32 s80, s98, {FREC}
    """)
    for j in range(1, 8): a(f"s_add_u32 s{80+j}, s80, {j*8192}")
    def recloads(b=96):
        for j in range(8):
            a(f"buffer_load_dwordx4 v[{b+4*j}:{b+3+4*j}], v13, s[56:59], s{80+j} offen sc1")
    recloads()
    if not EG: a("s_waitcnt vmcnt(8)")
    GV = 8
    if not EG:
        gatecalc(64, 68, 72)
        a("v_mov_b32 v10, v72\nv_mov_b32 v11, v73")
    else:
        a("v_mov_b32 v10, s90\nv_mov_b32 v11, s91")
    a(f"""
    s_mov_b32 s96, 0
    s_mov_b32 s97, -1
    v_cndmask_b32 v8, v10, v11, s[96:97]
    v_and_b32 v14, 7, v1
    v_lshlrev_b32 v14, 2, v14
    v_lshrrev_b32 v15, 4, v1
    v_and_b32 v15, 1, v15
    v_lshlrev_b32 v15, 1, v15
    v_add_u32 v14, v14, v15
    s_lshl_b32 s98, s34, 5
    s_mov_b32 s44, s26
    s_mov_b32 s45, s27
    s_mov_b32 s99, {SPIN}
    """)
    def fcheck(b):
        for j in range(8):
            a(f"v_cmpx_eq_u32 vcc, s66, v{b+1+4*j}")
            a(f"v_cmpx_eq_u32 vcc, s66, v{b+3+4*j}")
        a("s_not_b64 exec, exec")
    def fadd(b):
        a("s_mov_b64 exec, -1")
        for k in range(4):
            a(f"v_add_f32 v{32+2*k}, v{b+8*k}, v{b+8*k+4}")
            a(f"v_add_f32 v{33+2*k}, v{b+8*k+2}, v{b+8*k+6}")
    if FPIPE:
        if FSLEEP: a(f"s_sleep {FSLEEP}")
        recloads(64)
        a("FCHK:\ns_waitcnt vmcnt(8)")
        fcheck(96)
        a("s_cbranch_scc0 FOK")
        recloads(96)
        a("s_mov_b64 exec, -1\ns_waitcnt vmcnt(8)")
        fcheck(64)
        a("s_cbranch_scc0 FOKB")
        recloads(64)
        a("s_mov_b64 exec, -1\ns_sub_u32 s99, s99, 1\ns_cbranch_scc0 FCHK\ns_branch FOK\nFOKB:")
        fadd(64)
        a("s_branch FCOM\nFOK:")
        fadd(96)
        a("FCOM:")
    else:
        a("s_waitcnt vmcnt(0)\nFCHK:")
        fcheck(96)
        a("s_cbranch_scc0 FOK\ns_sub_u32 s99, s99, 1\ns_cbranch_scc1 FOK")
        recloads(96)
        a("s_mov_b64 exec, -1\ns_waitcnt vmcnt(0)\ns_branch FCHK\nFOK:")
        fadd(96)
    a(f"""
    v_add_f32 v48, v32, v34      ; A0
    v_add_f32 v50, v36, v38      ; B0
    v_add_f32 v49, v33, v35      ; A1
    v_add_f32 v51, v37, v39      ; B1
    v_permlane32_swap_b32 v48, v50
    v_permlane32_swap_b32 v49, v51
    v_add_f32 v48, v48, v50
    v_add_f32 v49, v49, v51
    v_permlane16_swap_b32 v48, v49
    v_add_f32 v48, v48, v49
    v_add_f32_dpp v48, v48, v48 row_ror:8 row_mask:0xf bank_mask:0xf
    v_cvt_pk_bf16_f32 v48, v48, v48
    v_lshlrev_b32 v48, 16, v48
    v_mul_f32 v48, v48, v8
    v_cvt_pk_bf16_f32 v48, v48, v48
    v_lshlrev_b32 v48, 16, v48
    v_mov_b32 v49, v48
    v_permlane32_swap_b32 v48, v49
    v_add_f32 v48, v48, v49
    v_cvt_pk_bf16_f32 v48, v48, v48
    s_mov_b32 exec_lo, 0x00ff00ff
    s_mov_b32 exec_hi, 0
    buffer_store_short v48, v14, s[44:47], s98 offen
    s_cmp_lg_u32 s34, 0
    s_cbranch_scc1 NOEPOCH
    s_add_u32 s64, s64, 1
    v_mov_b32 v2, s64
    v_mov_b32 v3, 0
    s_mov_b64 exec, 1
    buffer_store_dword v2, v3, s[56:59], 0 offen
NOEPOCH:
    """)
    if ts == 2:
        a(f"""
    s_waitcnt vmcnt(0)
    s_memrealtime s[96:97]
    s_waitcnt lgkmcnt(0)
    s_mov_b32 s84, s28
    s_mov_b32 s85, s29
    s_mov_b32 s86, 256
    s_mov_b32 s87, 0x00020000
    v_mov_b32 v1, 0
    s_mov_b64 exec, 1
    v_mov_b32 v2, s96
    buffer_atomic_umax v2, v1, s[84:87], 0 offen offset:{15*4}
        """)
    if ts in (1,3):
        a(f"""
    s_waitcnt vmcnt(0)
    s_memrealtime s[96:97]
    s_waitcnt lgkmcnt(0)
    s_add_u32 s84, s30, {TSOFF}
    s_addc_u32 s85, s31, 0
    s_mov_b32 s86, 0x100000
    s_mov_b32 s87, 0x00020000
    s_lshl_b32 s88, s2, 9
    v_mov_b32 v1, 0
    s_mov_b64 exec, 1
    v_mov_b32 v2, s96
    v_mov_b32 v3, s97
    buffer_store_dwordx2 v[2:3], v1, s[84:87], s88 offen offset:{(nst+2)*8}
        """)
    a("END:")
    open(name, "w").write(a.text(256, 512, LDS_BYTES, 128))
    mk.build(name)
    return a

if __name__ == "__main__":
    kw = {}
    name = sys.argv[1]
    for x in sys.argv[2:]:
        k, v = x.split("=")
        kw[k] = int(v) if v.lstrip("-").isdigit() else v
    a = gen(name, **kw)
    print("nops inserted:", a.nops, "lines:", len(a.lines))
```
